```python
import torch

def _softmax(x, axis=-1):
    return torch.softmax(x, dim=axis)
def _gelu(x):
    return torch.nn.functional.gelu(x, approximate="tanh")
def _silu(x):
    return torch.nn.functional.silu(x)
def _sigmoid(x):
    return torch.sigmoid(x)
def _layernorm(x, axis=-1, eps=1e-5):
    m = x.mean(dim=axis, keepdim=True)
    v = x.var(dim=axis, keepdim=True, unbiased=False)
    return (x - m) / torch.sqrt(v + eps)
def _scatter_add(tgt, idx, src, axis=0):
    return tgt.clone().index_add_(axis, idx, src)
def _segment_sum(src, seg, n):
    out = torch.zeros((n,) + src.shape[1:], dtype=src.dtype)
    return out.index_add_(0, seg, src)
def _pad(x, pw):
    flat = tuple(v for pair in reversed(pw) for v in pair)
    return torch.nn.functional.pad(x, flat)

kernel_name = 'concat_heads__mha_block__ssm_conv_s4d__prompt'

def setup_inputs():

    _w = (lambda a: (lambda t: t.to(torch.bfloat16) if t.is_floating_point() else t)(torch.as_tensor(a)))
    def _A_setup():
        B, S, D, H = 1, 2048, 512, 32
        return {
            "x": _w((lambda *s: torch.randn(*s, dtype=torch.bfloat16) * 0.2)(B, S, D)),
            "wqkv": _w((lambda *s: torch.randn(*s, dtype=torch.bfloat16) * 0.2)(D, 3 * D)),
            "wo": _w((lambda *s: torch.randn(*s, dtype=torch.bfloat16) * 0.05)(D, D)),
        }
    _A_in = _A_setup()

    def _B_setup():
        Bsz, L, D, N = 1, 2048, 512, 128
        return {
            "u": _w((lambda *s: torch.randn(*s, dtype=torch.bfloat16) * 0.05)(Bsz, L, D)),
            "log_A_real": _w((lambda *s: torch.randn(*s, dtype=torch.bfloat16) * 6.4)(D, N) * 0.5),
            "A_imag": _w((lambda *s: torch.randn(*s, dtype=torch.bfloat16) * 0.05)(D, N) * 3.14),
            "C_real": _w((lambda *s: torch.randn(*s, dtype=torch.bfloat16) * 0.4)(D, N) / N ** 0.5),
            "C_imag": _w((lambda *s: torch.randn(*s, dtype=torch.bfloat16) * 0.4)(D, N) / N ** 0.5),
            "log_dt": _w((lambda *s: torch.randn(*s, dtype=torch.bfloat16) * 0.05)(D) * 0.5 - 4.0),
            "D_skip": _w((lambda *s: torch.randn(*s, dtype=torch.bfloat16) * 0.05)(D)),
        }
    _B_in = _B_setup()

    return {
        "A_x": _A_in["x"],
        "A_wqkv": _A_in["wqkv"],
        "A_wo": _A_in["wo"],
        "B_u": _B_in["u"],
        "B_log_A_real": _B_in["log_A_real"],
        "B_A_imag": _B_in["A_imag"],
        "B_C_real": _B_in["C_real"],
        "B_C_imag": _B_in["C_imag"],
        "B_log_dt": _B_in["log_dt"],
        "B_D_skip": _B_in["D_skip"],
    }

def reference(A_x, A_wqkv, A_wo, B_u, B_log_A_real, B_A_imag, B_C_real, B_C_imag, B_log_dt, B_D_skip):
    def _A_ref(x, wqkv, wo):
        B, S, D = x.shape
        H = 32
        Dh = D // H
        qkv = (lambda x, *d: x.permute(*d))((x @ wqkv).reshape(B, S, 3, H, Dh), 2, 0, 3, 1, 4)
        q, k, v = qkv[0], qkv[1], qkv[2]
        scores = torch.einsum("bhqd,bhkd->bhqk", q, k) * (Dh ** -0.5)
        p = _softmax(scores, axis=-1)
        o = torch.einsum("bhqk,bhkd->bhqd", p, v)
        return (lambda x, *d: x.permute(*d))(o, 0, 2, 1, 3).reshape(B, S, D) @ wo

    def _B_ref(u, log_A_real, A_imag, C_real, C_imag, log_dt, D_skip):
        L = u.shape[1]
        dt = torch.exp(log_dt)
        A = -torch.exp(log_A_real) + 1j * A_imag
        C = (C_real + 1j * C_imag) * dt[:, None]
        pos = (lambda x, dt: x.to(dt))(torch.arange(L), log_dt.dtype)
        P = torch.exp((A * dt[:, None])[:, :, None] * pos[None, None, :])
        K = 2.0 * torch.einsum("dn,dnl->dl", C, P).real
        L2 = 2 * L
        u_t = (lambda x, *d: x.permute(*d))(u, 0, 2, 1)
        Kf = (lambda x, *a, **k: torch.fft.rfft(x.float(), *a, **k))(K, L2)
        Uf = (lambda x, *a, **k: torch.fft.rfft(x.float(), *a, **k))(u_t, L2)
        y = (lambda x, *a, **k: torch.fft.irfft(x, *a, **k).to(torch.bfloat16))(Uf * Kf[None, :, :], L2)[:, :, :L]
        y = (lambda x, *d: x.permute(*d))(y, 0, 2, 1)
        return y + u * D_skip[None, None, :]

    a = _A_ref(A_x, A_wqkv, A_wo)
    b = _B_ref(B_u, B_log_A_real, B_A_imag, B_C_real, B_C_imag, B_log_dt, B_D_skip)
    return torch.concatenate([a, b], axis=-1)
```

```python
class E:
    def __init__(self):
        self.L = []
        self.uid = 0
    def __call__(self, s=""):
        for line in s.split("\n"):
            line = line.strip()
            if not line: continue
            if line.endswith(":"):
                self.L.append(line)
            else:
                self.L.append("    " + line)
    def label(self, n): self.L.append(n + ":")
    def c(self, s): self.L.append("    ; " + s)
    def nop(self, n):
        while n > 0:
            k = min(n, 16)
            self.L.append(f"    s_nop {k-1}")
            n -= k
    def text(self): return "\n".join(self.L) + "\n"
    def newlabel(self, p="L"):
        self.uid += 1
        return f"{p}_{self.uid}"

def vr(base, n=1):
    return f"v{base}" if n == 1 else f"v[{base}:{base+n-1}]"
def sr(base, n=1):
    return f"s{base}" if n == 1 else f"s[{base}:{base+n-1}]"

def kdesc(name, vgpr, sgpr=96, acc=None):
    if acc is None: acc = (vgpr + 3)//4*4
    return f""".p2align 6
.amdhsa_kernel {name}
  .amdhsa_next_free_vgpr {vgpr}
  .amdhsa_next_free_sgpr {sgpr}
  .amdhsa_accum_offset {acc}
  .amdhsa_group_segment_fixed_size 0
  .amdhsa_kernarg_size 104
  .amdhsa_user_sgpr_count 2
  .amdhsa_user_sgpr_kernarg_segment_ptr 1
  .amdhsa_system_sgpr_workgroup_id_x 1
.end_amdhsa_kernel
"""
def khead(name):
    return f""".globl {name}
.p2align 8
.type {name},@function
{name}:
"""
```

```python
from asmlib import *

QF=0; KF=0x200000; VF=0x400000; OW=0x600000; UT=0x800000; KT=0xA00000
KT_CH = 8448
WS_USED = KT + 512*KT_CH

def srd(e, d, base_lo, base_hi, size):
    e(f"s_mov_b32 s{d}, s{base_lo}")
    e(f"s_and_b32 s{d+1}, s{base_hi}, 0xffff")
    e(f"s_mov_b32 s{d+2}, {size}")
    e(f"s_mov_b32 s{d+3}, 0x20000")

def gen_k1():
    e = E()
    e("s_cmp_ge_u32 s2, 512")
    e("s_cbranch_scc1 K1_END")
    e("s_cmp_ge_u32 s2, 256")
    e("s_cbranch_scc1 K1_KGEN")
    gemm(e)
    e("s_endpgm")
    e.label("K1_KGEN")
    kgen(e)
    e.label("K1_END")
    e("s_endpgm")
    return e.text()

def gemm(e):
    NST=16; RING=5
    XSLOT=8192; WBASE=40960; WSLOT=6144
    e("s_load_dwordx4 s[4:7], s[0:1], 0")
    e("s_load_dwordx2 s[8:9], s[0:1], 96")
    e("v_lshrrev_b32 v1, 6, v0")
    e("v_and_b32 v2, 63, v0")
    e("v_readfirstlane_b32 s24, v1")
    e("s_and_b32 s25, s2, 7")
    e("s_lshr_b32 s26, s2, 3")
    e("s_lshr_b32 s27, s25, 1")
    e("s_lshl_b32 s27, s27, 2")
    e("s_and_b32 s28, s26, 3")
    e("s_add_u32 s27, s27, s28")
    e("s_and_b32 s28, s25, 1")
    e("s_lshl_b32 s28, s28, 3")
    e("s_lshr_b32 s29, s26, 2")
    e("s_add_u32 s28, s28, s29")
    e("v_lshrrev_b32 v3, 2, v2")
    e("s_lshl_b32 s29, s24, 5")
    e("v_add_u32 v3, s29, v3")
    e("v_lshlrev_b32 v3, 10, v3")
    e("v_lshrrev_b32 v4, 4, v2")
    e("v_xor_b32 v4, v4, v2")
    e("v_and_b32 v4, 3, v4")
    e("v_lshl_add_u32 v3, v4, 4, v3")
    e("s_mul_i32 s29, s24, 96")
    for (dst, add) in ((4,0),(5,64)):
        e(f"v_add_u32 v6, s29, v2")
        if add: e(f"v_add_u32 v6, {add}, v6")
        e("v_mul_u32_u24 v7, 171, v6")
        e("v_lshrrev_b32 v7, 11, v7")
        e("v_mul_u32_u24 v8, 12, v7")
        e("v_sub_u32 v8, v6, v8")
        e("v_mul_u32_u24 v7, 3072, v7")
        e("v_lshrrev_b32 v9, 2, v8")
        e("v_lshl_add_u32 v7, v9, 10, v7")
        e("v_and_b32 v8, 3, v8")
        e(f"v_lshl_add_u32 v{dst}, v8, 4, v7")
    e("v_and_b32 v9, 31, v2")
    e("v_lshrrev_b32 v10, 5, v2")
    e("v_lshrrev_b32 v11, 2, v9")
    e("v_xor_b32 v11, v11, v10")
    e("v_and_b32 v11, 3, v11")
    e("v_lshlrev_b32 v6, 6, v9")
    e("v_lshl_add_u32 v6, v11, 4, v6")
    e("s_lshl_b32 s29, s24, 11")
    e("v_add_u32 v6, s29, v6")
    e("v_xor_b32 v7, 32, v6")
    e("v_bfe_u32 v11, v2, 2, 2")
    e("v_lshl_add_u32 v11, v10, 3, v11")
    e("v_mul_u32_u24 v8, 192, v11")
    e("v_bfe_u32 v11, v2, 4, 1")
    e("v_lshl_add_u32 v8, v11, 5, v8")
    e("v_and_b32 v11, 3, v2")
    e("v_lshl_add_u32 v8, v11, 3, v8")
    e(f"v_add_u32 v8, {WBASE}, v8")
    e("v_lshlrev_b32 v12, 4, v2")
    e("v_and_b32 v11, 19, v9")
    e("v_and_b32 v13, 4, v9")
    e("v_lshl_or_b32 v11, v13, 1, v11")
    e("v_and_b32 v13, 8, v9")
    e("v_lshrrev_b32 v13, 1, v13")
    e("v_or_b32 v11, v11, v13")
    e("v_lshl_add_u32 v11, v10, 5, v11")
    e("v_lshlrev_b32 v13, 4, v11")
    e("v_lshrrev_b32 v11, 4, v9")
    e("v_lshlrev_b32 v14, 16, v11")
    e("v_lshl_add_u32 v14, v10, 8, v14")
    e("v_and_b32 v11, 15, v9")
    e("v_lshl_add_u32 v14, v11, 4, v14")
    e("s_waitcnt lgkmcnt(0)")
    e("s_lshl_b32 s29, s27, 17")
    e("s_add_u32 s4, s4, s29")
    e("s_addc_u32 s5, s5, 0")
    srd(e, 12, 4, 5, 131072)
    e("s_lshl_b32 s29, s28, 6")
    e("s_add_u32 s6, s6, s29")
    e("s_addc_u32 s7, s7, 0")
    e("s_mov_b32 s16, s6")
    e("s_and_b32 s17, s7, 0xffff")
    e("s_sub_u32 s18, 1572864, s29")
    e("s_mov_b32 s19, 0x20000")
    srd(e, 20, 8, 9, 0x600000)
    e("s_lshl_b32 s30, s24, 11")
    e("s_mul_i32 s31, s24, 1536")
    e("s_mov_b32 s34, -1")
    e("s_mov_b32 s35, 0")
    def dma(st):
        slot = st % RING
        e(f"s_add_u32 m0, s30, {slot*XSLOT}")
        e(f"s_mov_b32 s32, {st*64}")
        e(f"buffer_load_dwordx4 v3, s[12:15], s32 offen lds")
        e(f"s_add_u32 m0, s30, {slot*XSLOT+1024}")
        e(f"s_mov_b32 s32, {st*64+16384}")
        e(f"buffer_load_dwordx4 v3, s[12:15], s32 offen lds")
        e(f"s_add_u32 m0, s31, {WBASE+slot*WSLOT}")
        e(f"s_mov_b32 s32, {st*98304}")
        e(f"buffer_load_dwordx4 v4, s[16:19], s32 offen lds")
        e(f"s_add_u32 m0, s31, {WBASE+slot*WSLOT+1024}")
        e(f"s_mov_b64 exec, s[34:35]")
        e(f"buffer_load_dwordx4 v5, s[16:19], s32 offen lds")
        e(f"s_mov_b64 exec, -1")
    FR = [16, 48]
    ACC = [80, 96, 112]
    def frag_reads(st):
        slot = st % RING; b = FR[st & 1]
        L = []
        for ks in range(2):
            L.append(f"ds_read_b128 v[{b+4*ks}:{b+4*ks+3}], v{6+ks} offset:{slot*XSLOT}")
            for nt in range(3):
                r = b + 8 + (ks*3+nt)*4
                off = slot*WSLOT + ks*3072 + nt*64
                L.append(f"ds_read_b64_tr_b16 v[{r}:{r+1}], v8 offset:{off}")
                L.append(f"ds_read_b64_tr_b16 v[{r+2}:{r+3}], v8 offset:{off+768}")
        return L
    def mfmas(st):
        b = FR[st & 1]; L = []
        for ks in range(2):
            X = f"v[{b+4*ks}:{b+4*ks+3}]"
            for nt in range(3):
                r = b + 8 + (ks*3+nt)*4
                W = f"v[{r}:{r+3}]"
                a = ACC[nt]; A = f"v[{a}:{a+15}]"
                C = "0" if (st == 0 and ks == 0) else A
                if nt < 2: L.append(f"v_mfma_f32_32x32x16_bf16 {A}, {W}, {X}, {C}")
                else:      L.append(f"v_mfma_f32_32x32x16_bf16 {A}, {X}, {W}, {C}")
        return L
    for st in range(RING): dma(st)
    e(f"s_waitcnt vmcnt({4*(RING-1)})")
    e("s_barrier")
    for l in frag_reads(0): e(l)
    for st in range(NST):
        if st + 1 < NST:
            issued = min(st + RING - 1, NST - 1)
            n = 4 * (issued - (st + 1))
            e(f"s_waitcnt vmcnt({n}) lgkmcnt(0)")
            e("s_barrier")
            if st + RING < NST: dma(st + RING)
            R = frag_reads(st + 1); M = mfmas(st)
            ri = 0
            for mi, m in enumerate(M):
                e(m)
                k = 3 if mi < 4 else 1
                for _ in range(k):
                    if ri < len(R): e(R[ri]); ri += 1
            while ri < len(R): e(R[ri]); ri += 1
        else:
            e("s_waitcnt lgkmcnt(0)")
            for m in mfmas(st): e(m)
    e.nop(16)
    e("s_mov_b32 s33, 0x3eb8aa3b")
    for i in range(16): e(f"v_mul_f32 v{ACC[0]+i}, s33, v{ACC[0]+i}")
    e("s_lshl_b32 s36, s28, 7")
    e("s_lshl_b32 s37, s27, 2")
    e("s_add_u32 s36, s36, s37")
    e("s_add_u32 s36, s36, s24")
    e("s_lshl_b32 s36, s36, 10")
    P = 16
    for nt in range(3):
        a = ACC[nt]
        for i in range(8): e(f"v_cvt_pk_bf16_f32 v{P+8*nt+i}, v{a+2*i}, v{a+2*i+1}")
    e(f"s_add_u32 s37, s36, {QF}")
    e(f"buffer_store_dwordx4 v[{P}:{P+3}], v12, s[20:23], s37 offen")
    e(f"s_add_u32 s38, s36, {QF+65536}")
    e(f"buffer_store_dwordx4 v[{P+4}:{P+7}], v12, s[20:23], s38 offen")
    e(f"s_add_u32 s39, s36, {KF}")
    e(f"buffer_store_dwordx4 v[{P+8}:{P+11}], v13, s[20:23], s39 offen")
    e(f"s_add_u32 s40, s36, {KF+65536}")
    e(f"buffer_store_dwordx4 v[{P+12}:{P+15}], v13, s[20:23], s40 offen")
    e(f"s_add_u32 s41, s36, {VF}")
    e(f"buffer_store_dwordx4 v[{P+16}:{P+19}], v14, s[20:23], s41 offen")
    e(f"s_add_u32 s42, s36, {VF+512}")
    e(f"buffer_store_dwordx4 v[{P+20}:{P+23}], v14, s[20:23], s42 offen")

def cmul(e, d, z, w):
    e(f"v_pk_mul_f32 v[{d}:{d+1}], v[{z}:{z+1}], v[{w}:{w+1}] op_sel:[0,0] op_sel_hi:[0,1]")
    e(f"v_pk_fma_f32 v[{d}:{d+1}], v[{z}:{z+1}], v[{w}:{w+1}], v[{d}:{d+1}] op_sel:[1,1,0] op_sel_hi:[1,0,1] neg_lo:[1,0,0]")

def cexp(e, d, alpha, beta, mult, t0, t1):
    if mult is None:
        e(f"v_exp_f32 v{t0}, v{alpha}")
        e(f"v_fract_f32 v{t1}, v{beta}")
    else:
        e(f"v_mul_f32 v{t0}, {mult}, v{alpha}")
        e(f"v_mul_f32 v{t1}, {mult}, v{beta}")
        e(f"v_exp_f32 v{t0}, v{t0}")
        e(f"v_fract_f32 v{t1}, v{t1}")
    e("s_nop 0")
    e(f"v_cos_f32 v{d}, v{t1}")
    e(f"v_sin_f32 v{d+1}, v{t1}")
    e("s_nop 0")
    e(f"v_mul_f32 v{d}, v{d}, v{t0}")
    e(f"v_mul_f32 v{d+1}, v{d+1}, v{t0}")

def kgen(e):
    PITCH=528; CH=70*PITCH
    KST=4352
    e("s_load_dwordx4 s[4:7], s[0:1], 32")
    e("s_load_dwordx4 s[8:11], s[0:1], 48")
    e("s_load_dwordx2 s[12:13], s[0:1], 64")
    e("s_load_dwordx2 s[14:15], s[0:1], 24")
    e("s_load_dwordx2 s[16:17], s[0:1], 96")
    e("v_lshrrev_b32 v1, 6, v0")
    e("v_and_b32 v2, 63, v0")
    e("v_readfirstlane_b32 s24, v1")
    e("s_sub_u32 s25, s2, 256")
    e("s_and_b32 s26, s25, 7")
    e("s_lshr_b32 s27, s25, 3")
    e("s_lshl_b32 s28, s26, 6")
    e("s_lshl_b32 s29, s27, 1")
    e("s_add_u32 s28, s28, s29")
    e("s_lshr_b32 s30, s24, 1")
    e("s_and_b32 s31, s24, 1")
    e("s_add_u32 s32, s28, s30")
    e("s_lshl_b32 s33, s32, 7")
    e("s_lshl_b32 s34, s31, 6")
    e("s_add_u32 s33, s33, s34")
    e("v_add_u32 v3, s33, v2")
    e("v_lshlrev_b32 v3, 1, v3")
    e("s_lshl_b32 s33, s32, 1")
    e("v_mov_b32 v4, s33")
    e("s_waitcnt lgkmcnt(0)")
    e("global_load_ushort v10, v3, s[4:5]")
    e("global_load_ushort v11, v3, s[6:7]")
    e("global_load_ushort v12, v3, s[8:9]")
    e("global_load_ushort v13, v3, s[10:11]")
    e("global_load_ushort v14, v4, s[12:13]")
    e("s_and_b32 s36, s27, 3")
    e("s_lshr_b32 s37, s27, 2")
    e("v_and_b32 v5, 7, v2")
    e("v_lshrrev_b32 v6, 3, v2")
    e("s_lshl_b32 s38, s37, 8")
    e("s_lshl_b32 s39, s36, 3")
    e("s_add_u32 s38, s38, s39")
    e("v_lshlrev_b32 v7, 5, v5")
    e("v_add_u32 v7, s38, v7")
    e("v_lshlrev_b32 v7, 10, v7")
    e("s_lshl_b32 s38, s26, 7")
    e("v_lshl_add_u32 v7, v6, 4, v7")
    e("v_add_u32 v7, s38, v7")
    e("v_add_u32 v8, 0x1000, v7")
    e("s_lshl_b32 s38, s26, 18")
    e("s_lshl_b32 s39, s36, 10")
    e("s_add_u32 s38, s38, s39")
    e("s_lshl_b32 s39, s37, 7")
    e("s_add_u32 s38, s38, s39")
    e(f"s_add_u32 s38, s38, {UT}")
    e("v_lshlrev_b32 v56, 15, v6")
    e("v_lshl_add_u32 v56, v5, 4, v56")
    e("v_add_u32 v56, s38, v56")
    e("s_cmp_lg_u32 s24, 0")
    e("s_cbranch_scc1 KG_NOU1")
    for t in range(8):
        if t < 4: e(f"global_load_dwordx4 v[{96+4*t}:{99+4*t}], v7, s[14:15] offset:{1024*t}")
        else:
            e(f"global_load_dwordx4 v[{96+4*t}:{99+4*t}], v8, s[14:15] offset:{1024*(t-4)}")
    e.label("KG_NOU1")
    e("s_cmp_lg_u32 s24, 0")
    e("s_cbranch_scc1 KG_W0")
    e("s_waitcnt vmcnt(8)")
    e("s_branch KG_W1")
    e.label("KG_W0")
    e("s_waitcnt vmcnt(0)")
    e.label("KG_W1")
    LOG2E="0x3fb8aa3b"; INV2PI="0x3e22f983"
    for r in (10,11,12,13,14): e(f"v_lshlrev_b32 v{r}, 16, v{r}")
    e(f"v_mul_f32 v14, {LOG2E}, v14")
    e(f"v_mul_f32 v10, {LOG2E}, v10")
    e("v_exp_f32 v14, v14")
    e("v_exp_f32 v10, v10")
    e("s_nop 0")
    e("v_cvt_pk_bf16_f32 v14, v14, v14")
    e("v_cvt_pk_bf16_f32 v10, v10, v10")
    e("v_lshlrev_b32 v14, 16, v14")
    e("v_lshlrev_b32 v10, 16, v10")
    e("v_mul_f32 v10, v10, v14")
    e("v_mul_f32 v11, v11, v14")
    e(f"v_mul_f32 v10, 0xbfb8aa3b, v10")
    e(f"v_mul_f32 v11, {INV2PI}, v11")
    e("v_mul_f32 v12, v12, v14")
    e("v_mul_f32 v13, v13, v14")
    e("v_add_f32 v12, v12, v12")
    e("v_add_f32 v13, v13, v13")
    e(f"s_mul_i32 s36, s30, {CH}")
    e("s_lshl_b32 s37, s31, 8")
    e("s_add_u32 s36, s36, s37")
    e("v_lshlrev_b32 v15, 2, v2")
    e("v_add_u32 v15, s36, v15")
    W1=16; W2=18; W32=20; W64=22; W1K=24
    cexp(e, W1, 10, 11, None, 4, 5)
    cexp(e, W32, 10, 11, "0x42000000", 4, 5)
    cexp(e, W1K, 10, 11, "0x44800000", 4, 5)
    cmul(e, W2, W1, W1)
    cmul(e, W64, W32, W32)
    def wrY(row, z):
        e(f"v_cvt_pk_bf16_f32 v{z_tmp(row)}, v{z}, -v{z+1}")
        e(f"ds_write_b32 v15, v{z_tmp(row)} offset:{row*PITCH}")
    def wrX(row, z):
        e(f"v_cvt_pk_bf16_f32 v{z_tmp(row)}, v{z}, v{z+1}")
        e(f"ds_write_b32 v15, v{z_tmp(row)} offset:{row*PITCH}")
    def z_tmp(row): return 60 + (row % 8)
    e("v_mov_b32 v28, 1.0")
    e("v_mov_b32 v29, 0")
    e(f"v_mov_b32 v32, v{W1}")
    e(f"v_mov_b32 v33, v{W1+1}")
    e("v_mov_b32 v36, v12")
    e("v_mov_b32 v37, v13")
    cmul(e, 40, 12, W32)
    wrY(32+0, 28); wrY(32+1, 32); wrX(0, 36); wrX(1, 40)
    ye, yo, xe, xo = 28, 32, 36, 40
    saved = {8:44, 16:46, 24:48, 32:50}
    for k in range(1, 17):
        j = 2*k
        nye = saved.get(j, (30 if ye in (28,44,46,48,50) else 28))
        cmul(e, nye, ye, W2)
        if k < 16:
            nyo = 34 if yo == 32 else 32
            cmul(e, nyo, yo, W2)
            nxe = 38 if xe == 36 else 36
            cmul(e, nxe, xe, W64)
            nxo = 42 if xo == 40 else 40
            cmul(e, nxo, xo, W64)
        wrY(32+j, nye)
        ye = nye
        if k < 16:
            wrY(32+j+1, nyo); wrX(j, nxe); wrX(j+1, nxo)
            yo, xe, xo = nyo, nxe, nxo
    wrY(65, W1K)
    for i, rho in enumerate((8,16,24,32)):
        cmul(e, 52+2*(i&1), saved[rho], W1K)
        wrY(66+i, 52+2*(i&1))
    e("v_and_b32 v5, 31, v2")
    e("v_lshrrev_b32 v6, 5, v2")
    e(f"s_mul_i32 s36, s30, {CH}")
    e("v_lshlrev_b32 v7, 4, v6")
    e("v_add_u32 v7, s36, v7")
    e(f"v_mul_u32_u24 v8, {PITCH}, v5")
    e("v_add_u32 v16, v7, v8")
    e("v_cvt_f32_u32 v9, v5")
    def rho(dst, base):
        e(f"v_add_f32 v{dst}, {base}, v9")
        e(f"v_cvt_pk_bf16_f32 v{dst}, v{dst}, v{dst}")
        e(f"v_lshlrev_b32 v{dst}, 16, v{dst}")
        e(f"v_subrev_f32 v{dst}, {base}, v{dst}")
        e(f"v_cvt_u32_f32 v{dst}, v{dst}")
    e("s_cmp_eq_u32 s31, 0")
    e("s_cbranch_scc0 KG_NH1")
    e("v_add_u32 v17, 32, v5")
    rho(18, "0x43800000")
    e("v_add_u32 v18, 32, v18")
    e("s_branch KG_NH2")
    e.label("KG_NH1")
    rho(17, "0x44000000")
    e("v_add_u32 v17, 32, v17")
    rho(18, "0x44800000")
    e("v_lshrrev_b32 v18, 3, v18")
    e("v_add_u32 v18, 65, v18")
    e.label("KG_NH2")
    e(f"v_mul_u32_u24 v17, {PITCH}, v17")
    e(f"v_mul_u32_u24 v18, {PITCH}, v18")
    e("v_add_u32 v17, v7, v17")
    e("v_add_u32 v18, v7, v18")
    e("s_waitcnt lgkmcnt(0)")
    e("s_barrier")
    def rd(ks):
        b = 20 + 12*(ks % 3)
        e(f"ds_read_b128 v[{b}:{b+3}], v16 offset:{32*ks}")
        e(f"ds_read_b128 v[{b+4}:{b+7}], v17 offset:{32*ks}")
        e(f"ds_read_b128 v[{b+8}:{b+11}], v18 offset:{32*ks}")
    rd(0); rd(1)
    for ks in range(16):
        if ks + 2 < 16:
            rd(ks+2); e("s_waitcnt lgkmcnt(6)")
        elif ks + 1 < 16: e("s_waitcnt lgkmcnt(3)")
        else: e("s_waitcnt lgkmcnt(0)")
        b = 20 + 12*(ks % 3)
        C = "0" if ks == 0 else "v[64:79]"
        e(f"v_mfma_f32_32x32x16_bf16 v[64:79], v[{b+4}:{b+7}], v[{b}:{b+3}], {C}")
        C = "0" if ks == 0 else "v[80:95]"
        e(f"v_mfma_f32_32x32x16_bf16 v[80:95], v[{b+8}:{b+11}], v[{b}:{b+3}], {C}")
    e("s_barrier")
    e.nop(12)
    e(f"s_mul_i32 s36, s30, {KST}")
    e("v_lshlrev_b32 v7, 6, v5")
    e("v_lshl_add_u32 v7, v6, 3, v7")
    e("v_add_u32 v7, s36, v7")
    e("v_add_u32 v7, 64, v7")
    for a in (64, 80):
        for i in range(8): e(f"v_cvt_pk_bf16_f32 v{a+i}, v{a+2*i}, v{a+2*i+1}")
    e("s_mov_b32 s40, 0xff")
    e("s_mov_b32 s42, 0xff00")
    e("s_mov_b32 s44, 0")
    e("s_cmp_eq_u32 s31, 0")
    e("s_cbranch_scc1 KG_MSK")
    e("s_mov_b32 s40, 0xffff0000")
    e("s_mov_b32 s42, -1")
    e("s_mov_b32 s44, 2048")
    e.label("KG_MSK")
    e("s_mov_b32 s41, s40")
    e("s_mov_b32 s43, s42")
    e("v_add_u32 v8, s44, v7")
    e("s_mov_b64 exec, s[40:41]")
    for g in range(4): e(f"ds_write_b64 v7, v[{64+2*g}:{65+2*g}] offset:{16*g}")
    e("s_mov_b64 exec, s[42:43]")
    for g in range(4): e(f"ds_write_b64 v8, v[{80+2*g}:{81+2*g}] offset:{16*g}")
    e("s_mov_b64 exec, -1")
    e("v_mov_b32 v20, 0")
    e("v_lshlrev_b32 v21, 2, v2")
    e("v_add_u32 v21, s36, v21")
    e("s_mov_b32 s40, 0xffff")
    e("s_mov_b32 s41, 0")
    e("s_mov_b64 exec, s[40:41]")
    e("ds_write_b32 v21, v20")
    e("s_mov_b32 s40, -1")
    e("s_mov_b32 s41, 0xffff")
    e("s_mov_b64 exec, s[40:41]")
    e("ds_write_b32 v21, v20 offset:4160")
    e("s_mov_b64 exec, -1")
    e("s_waitcnt lgkmcnt(0)")
    e("s_barrier")
    e("s_lshl_b32 s37, s31, 6")
    e("v_add_u32 v5, s37, v2")
    e("v_lshlrev_b32 v6, 4, v5")
    e("v_add_u32 v7, s36, v6")
    e(f"s_mul_i32 s38, s32, {KT_CH}")
    e(f"s_add_u32 s38, s38, {KT}")
    e("s_add_u32 s16, s16, s38")
    e("s_addc_u32 s17, s17, 0")
    for it in range(3):
        b = 20 + 12*it
        if it == 2:
            e("v_cmp_gt_u32 vcc, 8, v5")
            e("s_and_saveexec_b64 s[40:41], vcc")
            e("s_cbranch_execz KG_RB_SKIP")
        e(f"ds_read_b128 v[{b}:{b+3}], v7 offset:{2048*it}")
        e(f"ds_read_b32 v{b+4}, v7 offset:{2048*it+16}")
        e("s_waitcnt lgkmcnt(0)")
        for i in range(4): e(f"v_alignbit_b32 v{b+6+i}, v{b+i+1}, v{b+i}, 16")
        if it < 2:
            e(f"global_store_dwordx4 v6, v[{b}:{b+3}], s[16:17] offset:{2048*it}")
        else:
            e("v_add_u32 v8, 0x1000, v6")
            e(f"global_store_dwordx4 v8, v[{b}:{b+3}], s[16:17]")
        e(f"v_add_u32 v{b+10}, {4224+2048*it}, v6")
        e(f"global_store_dwordx4 v{b+10}, v[{b+6}:{b+9}], s[16:17]")
    e.label("KG_RB_SKIP")
    e("s_mov_b64 exec, -1")
    e("s_cmp_lg_u32 s24, 0")
    e("s_cbranch_scc1 KG_DONE")
    e("s_load_dwordx2 s[16:17], s[0:1], 96")
    e("s_mov_b32 s40, 0x05040100")
    e("s_mov_b32 s41, 0x07060302")
    e("s_waitcnt vmcnt(0) lgkmcnt(0)")
    for k in range(8):
        sel = "s40" if k % 2 == 0 else "s41"
        o = 20 + 4*(k % 4)
        for j in range(4):
            lo = 96 + 4*(7-2*j) + (k >> 1)
            hi = 96 + 4*(6-2*j) + (k >> 1)
            e(f"v_perm_b32 v{o+j}, v{hi}, v{lo}, {sel}")
        e(f"global_store_dwordx4 v56, v[{o}:{o+3}], s[16:17]")
        if k < 7: e("v_add_u32 v56, 0x1000, v56")
    e.label("KG_DONE")
```

```python
from asmlib import *
from gen_k1 import QF,KF,VF,OW,UT,KT,KT_CH,srd

UB = 131072
MB = UB + 12288
EXB = UB
FLG = UB + 20480
K2_LDS = FLG + 64

def gen_k2(with_conv=True):
    e = E()
    e("s_cmp_ge_u32 s2, 256")
    e("s_cbranch_scc1 K2_END")
    e("s_load_dwordx2 s[8:9], s[0:1], 96")
    e("s_load_dwordx4 s[4:7], s[0:1], 72")
    e("v_lshrrev_b32 v1, 6, v0")
    e("v_and_b32 v2, 63, v0")
    e("v_readfirstlane_b32 s24, v1")
    e("s_and_b32 s25, s2, 7")
    e("s_lshr_b32 s26, s2, 3")
    e("s_cmp_ge_u32 s24, 8")
    e("s_cbranch_scc1 K2_CONV")
    attn(e)
    e("s_endpgm")
    e.label("K2_CONV")
    if with_conv:
        conv(e)
    else:
        e("s_barrier"); e("s_barrier"); e("s_barrier")
    e.label("K2_END")
    e("s_endpgm")
    return e.text()

S = [[16,32],[48,64]]
O = [80,96]
Q = [112,116]
KR = [120,124]
VR = [[128,132],[136,140]]
IDX = 144
VK, VV = 145, 146
T0 = 148

def attn(e):
    e("s_lshl_b32 s27, s25, 2")
    e("s_and_b32 s28, s26, 3")
    e("s_add_u32 s27, s27, s28")
    e("s_lshr_b32 s28, s26, 2")
    e("s_and_b32 s29, s24, 3")
    e("s_lshr_b32 s30, s24, 2")
    e("v_lshlrev_b32 v3, 4, v2")
    e("s_cmp_lg_u32 s24, 0")
    e("s_cbranch_scc1 AT_NOFLG")
    e("v_mov_b32 v4, 0")
    e(f"v_mov_b32 v5, {FLG}")
    e("ds_write_b32 v5, v4")
    e("ds_write_b32 v5, v4 offset:4")
    e("ds_write_b32 v5, v4 offset:8")
    e.label("AT_NOFLG")
    e("s_waitcnt lgkmcnt(0)")
    srd(e, 12, 8, 9, 0x800000)
    e("s_lshl_b32 s31, s27, 6")
    e("s_lshl_b32 s32, s28, 3")
    e("s_add_u32 s32, s32, s31")
    e("s_lshl_b32 s33, s29, 1")
    e("s_add_u32 s32, s32, s33")
    e("s_lshl_b32 s32, s32, 10")
    e(f"buffer_load_dwordx4 v[{Q[0]}:{Q[0]+3}], v3, s[12:15], s32 offen")
    e(f"buffer_load_dwordx4 v[{Q[1]}:{Q[1]+3}], v3, s[12:15], s32 offen offset:1024")
    e("s_lshl_b32 s33, s30, 5")
    e("s_add_u32 s33, s33, s31")
    e("s_lshl_b32 s33, s33, 10")
    e(f"s_add_u32 s33, s33, {KF}")
    e("s_lshl_b32 s34, s30, 16")
    e("s_lshl_b32 s35, s29, 10")
    e("s_add_u32 s36, s33, s35")
    e("s_add_u32 m0, s34, s35")
    e(f"s_add_u32 s37, s36, {VF-KF}")
    e("buffer_load_dwordx4 v3, s[12:15], s36 offen lds")
    e("s_add_u32 s38, s34, s35")
    e("s_add_u32 m0, s38, 32768")
    e("s_nop 0")
    e("buffer_load_dwordx4 v3, s[12:15], s37 offen lds")
    e("s_lshr_b32 s35, s29, 1")
    e("s_and_b32 s38, s29, 1")
    e(f"s_mul_i32 s39, s35, {VF-KF}")
    e("s_add_u32 s39, s39, s33")
    e("s_lshl_b32 s40, s35, 15")
    e("s_add_u32 s40, s40, s34")
    for (t0, cnt) in ((4,3),(10,11)):
        e(f"s_mul_i32 s41, s38, {cnt*1024}")
        e(f"s_add_u32 s41, s41, {t0*1024}")
        e("s_add_u32 s42, s39, s41")
        e("s_add_u32 s43, s40, s41")
        for i in range(cnt):
            e("s_mov_b32 m0, s43")
            if i < cnt-1: e("s_add_u32 s43, s43, 1024")
            else: e("s_nop 0")
            e("buffer_load_dwordx4 v3, s[12:15], s42 offen lds")
            if i < cnt-1: e("s_add_u32 s42, s42, 1024")
    e(f"v_add_u32 v{VK}, s34, v3")
    e("v_and_b32 v4, 15, v2")
    e("v_lshrrev_b32 v5, 5, v2")
    e("v_lshlrev_b32 v4, 4, v4")
    e("v_lshl_add_u32 v4, v5, 8, v4")
    e(f"v_add_u32 v{VV}, s34, v4")
    e(f"v_mov_b32 v{IDX}, 0xdddd")
    e("v_and_b32 v4, 31, v2")
    e("v_cmp_eq_u32 vcc, 16, v4")
    e("v_cmp_eq_u32 s[44:45], 20, v4")
    e("s_nop 1")
    e("s_or_b64 vcc, vcc, s[44:45]")
    e("v_mov_b32 v5, 0x3f803f80")
    e("v_mov_b32 v6, 0")
    e("s_nop 1")
    e("v_cndmask_b32 v6, v6, v5, vcc")
    for b in range(2):
        for hf in range(2):
            for i in range(4): e(f"v_mov_b32 v{VR[b][hf]+i}, v6")
    e("s_mov_b32 s46, 0xffff")
    e("s_mov_b32 s47, 0xffff")
    for t in range(2):
        for i in range(16): e(f"v_mov_b32 v{O[t]+i}, 0")
    def ldK(t):  return f"ds_read_b128 v[{KR[t&1]}:{KR[t&1]+3}], v{VK} offset:{t*1024}"
    def ldV(t):
        b = t & 1
        return ["s_mov_b64 exec, s[46:47]",
                f"ds_read_b128 v[{VR[b][0]}:{VR[b][0]+3}], v{VV} offset:{32768+t*1024}",
                f"ds_read_b128 v[{VR[b][1]}:{VR[b][1]+3}], v{VV} offset:{32768+t*1024+512}",
                "s_mov_b64 exec, -1"]
    def qk(t, tile):
        s = S[t&1][tile]
        return f"v_mfma_f32_32x32x16_bf16 v[{s}:{s+15}], v[{KR[t&1]}:{KR[t&1]+3}], v[{Q[tile]}:{Q[tile]+3}], 0"
    def pv(t, tile, hf):
        s = S[t&1][tile] + 8*hf; v = VR[t&1][hf]; o = O[tile]
        return f"v_smfmac_f32_32x32x32_bf16 v[{o}:{o+15}], v[{v}:{v+3}], v[{s}:{s+7}], v{IDX}"
    e("s_waitcnt vmcnt(14) lgkmcnt(0)")
    e("s_barrier")
    e("s_setprio 1")
    e(ldK(0)); e(ldK(1))
    for l in ldV(0): e(l)
    e("s_waitcnt lgkmcnt(0)")
    e(qk(0,0)); e(qk(0,1))
    e.nop(12)
    NT = 32
    for t in range(NT):
        sa, sb = S[t&1]
        ex = lambda r: e(f"v_exp_f32 v{r}, v{r}")
        if t == 2:
            e("s_waitcnt vmcnt(11)"); e("s_barrier")
        if t == 8:
            e("s_waitcnt vmcnt(0)"); e("s_barrier")
        e("s_waitcnt lgkmcnt(0)")
        if t+1 < NT: e(qk(t+1, 0))
        for i in range(0,4): ex(sa+i)
        if t > 0: e(pv(t-1, 1, 1))
        if t+2 < NT: e(ldK(t+2))
        if t+1 < NT:
            for l in ldV(t+1): e(l)
        for i in range(4,9): ex(sa+i)
        if t+1 < NT: e(qk(t+1, 1))
        for i in range(9,14): ex(sa+i)
        e(pv(t, 0, 0))
        for i in range(14,16): ex(sa+i)
        for i in range(0,3): ex(sb+i)
        e(pv(t, 0, 1))
        for i in range(3,10): ex(sb+i)
        e(pv(t, 1, 0))
        for i in range(10,16): ex(sb+i)
    e("s_nop 1")
    e(pv(NT-1, 1, 1))
    e("s_setprio 0")
    e.nop(16)
    finalize(e, check=True)
    e("s_endpgm")
    e.label("AT_FALLBACK")
    fallback(e)
    finalize(e, check=False)

def finalize(e, check):
    sfx = "C" if check else "F"
    if check:
        e(f"v_mov_b32 v{T0}, 0")
        for t in range(2):
            for i in range(8): e(f"v_fma_f32 v{T0}, v{O[t]+i}, 0, v{T0}")
        e("s_mov_b32 s48, 0x21800000")
        e("s_mov_b32 s49, 0x5d800000")
        e(f"v_cmp_u_f32 vcc, v{T0}, v{T0}")
        for t in range(2):
            e(f"v_cmp_nle_f32 s[50:51], s48, v{O[t]+8}")
            e(f"v_cmp_nge_f32 s[58:59], s49, v{O[t]+8}")
            e("s_nop 1")
            e("s_or_b64 vcc, vcc, s[50:51]")
            e("s_or_b64 vcc, vcc, s[58:59]")
        e("s_cmp_eq_u64 vcc, 0")
        e(f"s_cbranch_scc1 AT_OK{sfx}")
        e("v_mov_b32 v4, 1")
        e(f"v_mov_b32 v5, {FLG}")
        e("ds_write_b32 v5, v4")
        e.label(f"AT_OK{sfx}")
    e("s_waitcnt lgkmcnt(0)")
    e("s_barrier")
    e("s_mul_i32 s52, s24, 2304")
    e(f"s_add_u32 s52, s52, {EXB}")
    e("v_lshlrev_b32 v4, 4, v2")
    e("v_add_u32 v4, s52, v4")
    e("v_lshlrev_b32 v5, 2, v2")
    e("v_add_u32 v5, s52, v5")
    e("s_cmp_eq_u32 s30, 0")
    e(f"s_cbranch_scc1 AT_SB{sfx}")
    e(f"ds_write_b128 v4, v[{O[0]}:{O[0]+3}]")
    e(f"ds_write_b128 v4, v[{O[0]+4}:{O[0]+7}] offset:1024")
    e(f"ds_write_b32 v5, v{O[0]+8} offset:2048")
    e("s_nop 1")
    for i in range(9): e(f"v_mov_b32 v{O[0]+i}, v{O[1]+i}")
    e(f"s_branch AT_SD{sfx}")
    e.label(f"AT_SB{sfx}")
    e(f"ds_write_b128 v4, v[{O[1]}:{O[1]+3}]")
    e(f"ds_write_b128 v4, v[{O[1]+4}:{O[1]+7}] offset:1024")
    e(f"ds_write_b32 v5, v{O[1]+8} offset:2048")
    e.label(f"AT_SD{sfx}")
    e("s_waitcnt lgkmcnt(0)")
    e("s_barrier")
    e("s_xor_b32 s53, s24, 4")
    e("s_mul_i32 s53, s53, 2304")
    e(f"s_add_u32 s53, s53, {EXB}")
    e("v_lshlrev_b32 v4, 4, v2")
    e("v_add_u32 v4, s53, v4")
    e("v_lshlrev_b32 v5, 2, v2")
    e("v_add_u32 v5, s53, v5")
    e(f"ds_read_b128 v[{T0}:{T0+3}], v4")
    e(f"ds_read_b128 v[{T0+4}:{T0+7}], v4 offset:1024")
    e(f"ds_read_b32 v{T0+8}, v5 offset:2048")
    if check:
        e(f"v_mov_b32 v6, {FLG}")
        e(f"ds_read_b32 v7, v6")
    e("s_waitcnt lgkmcnt(0)")
    if check:
        e("v_readfirstlane_b32 s54, v7")
        e("s_nop 3")
        e("s_cmp_lg_u32 s54, 0")
        e("s_cbranch_scc1 AT_FALLBACK")
    for i in range(9): e(f"v_add_f32 v{O[0]+i}, v{O[0]+i}, v{T0+i}")
    e(f"v_rcp_f32 v{T0}, v{O[0]+8}")
    e("s_nop 0")
    for i in range(8): e(f"v_mul_f32 v{O[0]+i}, v{O[0]+i}, v{T0}")
    for i in range(4): e(f"v_cvt_pk_bf16_f32 v{T0+4+i}, v{O[0]+2*i}, v{O[0]+2*i+1}")
    e("s_lshl_b32 s55, s28, 3")
    e("s_lshl_b32 s56, s29, 1")
    e("s_add_u32 s55, s55, s56")
    e("s_add_u32 s55, s55, s30")
    e("s_lshl_b32 s55, s55, 5")
    e("s_add_u32 s55, s55, s27")
    e("s_lshl_b32 s55, s55, 10")
    e(f"s_add_u32 s55, s55, {OW}")
    e(f"buffer_store_dwordx4 v[{T0+4}:{T0+7}], v3, s[12:15], s55 offen")

def fallback(e):
    M = [T0+10, T0+11]
    e(f"v_mov_b32 v{M[0]}, 0xff800000")
    e(f"v_mov_b32 v{M[1]}, 0xff800000")
    e("v_lshlrev_b32 v4, 4, v2")
    e("s_mov_b32 s57, 0")
    e.label("FB_MAX")
    e(f"ds_read_b128 v[{KR[0]}:{KR[0]+3}], v4")
    e("s_waitcnt lgkmcnt(0)")
    for t in range(2):
        s = S[0][t]
        e(f"v_mfma_f32_32x32x16_bf16 v[{s}:{s+15}], v[{KR[0]}:{KR[0]+3}], v[{Q[t]}:{Q[t]+3}], 0")
    e.nop(16)
    for t in range(2):
        s = S[0][t]
        for i in range(0,16,2): e(f"v_max3_f32 v{M[t]}, v{s+i}, v{s+i+1}, v{M[t]}")
    e("s_add_u32 s57, s57, 1")
    e("s_cmp_eq_u32 s57, 32")
    e("s_movk_i32 s58, 1024")
    e("s_cselect_b32 s58, 33792, s58")
    e("v_add_u32 v4, s58, v4")
    e("s_cmp_lt_u32 s57, 64")
    e("s_cbranch_scc1 FB_MAX")
    for t in range(2):
        e(f"v_mov_b32 v5, v{M[t]}")
        e("s_nop 1")
        e(f"v_permlane32_swap_b32 v{M[t]}, v5")
        e("s_nop 1")
        e(f"v_max_f32 v{M[t]}, v{M[t]}, v5")
        for i in range(16): e(f"v_sub_f32 v{S[1][t]+i}, 0, v{M[t]}")
    for t in range(2):
        for i in range(16): e(f"v_mov_b32 v{O[t]+i}, 0")
    e(f"v_mov_b32 v4, v{VK}")
    e(f"v_mov_b32 v5, v{VV}")
    e("s_mov_b32 s57, 0")
    e.label("FB_MAIN")
    e(f"ds_read_b128 v[{KR[0]}:{KR[0]+3}], v4")
    e("s_mov_b64 exec, s[46:47]")
    e(f"ds_read_b128 v[{VR[0][0]}:{VR[0][0]+3}], v5 offset:32768")
    e(f"ds_read_b128 v[{VR[0][1]}:{VR[0][1]+3}], v5 offset:33280")
    e("s_mov_b64 exec, -1")
    e("s_waitcnt lgkmcnt(0)")
    for t in range(2):
        s = S[0][t]; c = S[1][t]
        e(f"v_mfma_f32_32x32x16_bf16 v[{s}:{s+15}], v[{KR[0]}:{KR[0]+3}], v[{Q[t]}:{Q[t]+3}], v[{c}:{c+15}]")
    e.nop(16)
    for t in range(2):
        for i in range(16): e(f"v_exp_f32 v{S[0][t]+i}, v{S[0][t]+i}")
    e("s_nop 2")
    for t in range(2):
        for hf in range(2):
            s = S[0][t]+8*hf; v = VR[0][hf]; o = O[t]
            e(f"v_smfmac_f32_32x32x32_bf16 v[{o}:{o+15}], v[{v}:{v+3}], v[{s}:{s+7}], v{IDX}")
    e("v_add_u32 v4, 1024, v4")
    e("v_add_u32 v5, 1024, v5")
    e("s_add_u32 s57, s57, 1")
    e("s_cmp_lt_u32 s57, 32")
    e("s_cbranch_scc1 FB_MAIN")
    e.nop(16)

def conv(e):
    e("s_sub_u32 s27, s24, 8")
    e("s_lshr_b32 s28, s27, 1")
    e("s_and_b32 s29, s27, 1")
    e("s_lshl_b32 s30, s25, 6")
    e("s_lshl_b32 s31, s26, 1")
    e("s_add_u32 s30, s30, s31")
    e("s_add_u32 s30, s30, s28")
    e("v_lshlrev_b32 v3, 4, v2")
    e("s_waitcnt lgkmcnt(0)")
    srd(e, 12, 8, 9, 0x1000000)
    e("s_lshl_b32 s31, s30, 12")
    e(f"s_add_u32 s31, s31, {UT}")
    e("s_lshl_b32 s32, s29, 11")
    e("s_add_u32 s31, s31, s32")
    e("s_mul_i32 s33, s28, 6144")
    e(f"s_add_u32 s33, s33, {UB}")
    e("s_mul_i32 s34, s29, 3072")
    e("s_add_u32 s34, s34, s33")
    e("s_add_u32 m0, s34, 512")
    e("s_add_u32 s35, s31, 1024")
    e("buffer_load_dwordx4 v3, s[12:15], s31 offen lds")
    e("s_add_u32 m0, s34, 2048")
    e("s_nop 0")
    e("buffer_load_dwordx4 v3, s[12:15], s35 offen lds")
    e("v_and_b32 v4, 31, v2")
    e("v_lshrrev_b32 v5, 5, v2")
    e("v_mul_u32_u24 v6, 1536, v5")
    e("v_lshl_add_u32 v6, v4, 4, v6")
    e("v_add_u32 v6, s34, v6")
    for i in range(4): e(f"v_mov_b32 v{8+i}, 0")
    e("ds_write_b128 v6, v[8:11]")
    e(f"s_mul_i32 s35, s30, {KT_CH}")
    e(f"s_add_u32 s35, s35, {KT}")
    e("s_add_u32 s36, s8, s35")
    e("s_addc_u32 s37, s9, 0")
    e("v_lshl_add_u32 v12, v5, 3, v4")
    e("v_and_b32 v7, 1, v4")
    e("v_add_u32 v12, v12, v7")
    e("v_lshlrev_b32 v12, 1, v12")
    e("v_xor_b32 v7, 1, v7")
    e("v_mul_u32_u24 v7, 4224, v7")
    e("v_add_u32 v12, v12, v7")
    e("s_lshl_b32 s38, s30, 1")
    e("v_mov_b32 v7, s38")
    e("global_load_ushort v13, v7, s[4:5]")
    e("s_waitcnt vmcnt(0) lgkmcnt(0)")
    e("v_lshlrev_b32 v13, 16, v13")
    e("s_barrier"); e("s_barrier"); e("s_barrier")
    e("s_cmp_eq_u32 s29, 0")
    e("s_cbranch_scc0 CV_Y")
    conv_role(e, 0)
    e("s_endpgm")
    e.label("CV_Y")
    conv_role(e, 1)

def conv_role(e, role):
    ct = role
    SP = 31 if role == 0 else 47
    NS = 64 if role == 0 else 96
    e(f"v_sub_u32 v7, 3, v5")
    e("v_mul_u32_u24 v14, 1536, v7")
    e("v_lshl_add_u32 v14, v4, 4, v14")
    e("v_add_u32 v14, s33, v14")
    e(f"v_add_u32 v14, {(32+32*ct-SP)*16}, v14")
    e("v_subrev_u32 v15, 3072, v14")
    ACC0, ACC1 = 16, 32
    AR = [48+4*i for i in range(8)]
    A2 = [80+4*i for i in range(6)]
    BR = [104+4*i for i in range(4)]
    PA, PB = 6, 3
    def ldA(s):  return f"global_load_dwordx4 v[{AR[s%8]}:{AR[s%8]+3}], v12, s[36:37] offset:{32*s}"
    def ldA2(s): return f"global_load_dwordx4 v[{A2[s%6]}:{A2[s%6]+3}], v12, s[36:37] offset:{32*(s+64)}"
    def ldB(s):
        sp = s >> 1; r = 14 + (s & 1)
        return f"ds_read_b128 v[{BR[s%4]}:{BR[s%4]+3}], v{r} offset:{(SP-sp)*16}"
    order = []
    def issueA(s):
        if s < NS:
            e(ldA(s)); order.append(('a', s))
        if role == 0 and 32 <= s < 64:
            pass
    def issueA2(s):
        if role == 0 and 32 <= s < 64:
            e(ldA2(s)); order.append(('b', s))
    PA2 = 4
    for s in range(PA): issueA(s)
    for s in range(PB): e(ldB(s))
    for s in range(NS):
        if s + PA < NS: issueA(s + PA)
        issueA2(s + PA2)
        if s + PB < NS: e(ldB(s + PB))
        need = [i for i, x in enumerate(order) if x == ('a', s) or x == ('b', s)]
        n = len(order) - 1 - max(need)
        nb = min(PB, NS - 1 - s)
        e(f"s_waitcnt vmcnt({n}) lgkmcnt({nb})")
        a = AR[s%8]; b = BR[s%4]
        acc = ACC0 if role == 0 else ACC1
        C = "0" if s == 0 else f"v[{acc}:{acc+15}]"
        e(f"v_mfma_f32_32x32x16_bf16 v[{acc}:{acc+15}], v[{a}:{a+3}], v[{b}:{b+3}], {C}")
        if role == 0 and s >= 32:
            a2 = A2[s%6]
            C = "0" if s == 32 else f"v[{ACC1}:{ACC1+15}]"
            e(f"v_mfma_f32_32x32x16_bf16 v[{ACC1}:{ACC1+15}], v[{a2}:{a2+3}], v[{b}:{b+3}], {C}")
    e.nop(16)
    e("s_lshl_b32 s40, s28, 12")
    e(f"s_add_u32 s40, s40, {MB}")
    e("v_add_u32 v6, s40, v3")
    e("s_lshl_b32 s41, s28, 2")
    e(f"s_add_u32 s41, s41, {FLG+4}")
    e("v_mov_b32 v7, s41")
    if role == 0:
        for i in range(4): e(f"ds_write_b128 v6, v[{ACC1+4*i}:{ACC1+4*i+3}] offset:{1024*i}")
        e("s_waitcnt lgkmcnt(0)")
        e("v_mov_b32 v8, 1")
        e("ds_write_b32 v7, v8")
        acc = ACC0
    else:
        e("s_mov_b32 s45, 100000")
        e.label("CV_SPIN")
        e("s_sub_u32 s45, s45, 1")
        e("s_cmp_eq_u32 s45, 0")
        e("s_cbranch_scc1 CV_GO")
        e("ds_read_b32 v8, v7")
        e("s_waitcnt lgkmcnt(0)")
        e("v_readfirstlane_b32 s42, v8")
        e("s_nop 3")
        e("s_cmp_lg_u32 s42, 0")
        e("s_cbranch_scc1 CV_GO")
        e("s_sleep 4")
        e("s_branch CV_SPIN")
        e.label("CV_GO")
        for i in range(4): e(f"ds_read_b128 v[{48+4*i}:{48+4*i+3}], v6 offset:{1024*i}")
        e("s_waitcnt lgkmcnt(0)")
        for i in range(16): e(f"v_add_f32 v{ACC1+i}, v{ACC1+i}, v{48+i}")
        acc = ACC1
    e("v_xor_b32 v7, 1, v5")
    e("v_lshlrev_b32 v7, 3, v7")
    e("v_lshl_add_u32 v7, v4, 4, v7")
    e("v_add_u32 v7, s33, v7")
    for g in range(4): e(f"ds_read_b64 v[{64+2*g}:{65+2*g}], v7 offset:{g*1536+(32+32*ct)*16}")
    e("v_lshlrev_b32 v8, 16, v4")
    e("v_lshl_add_u32 v8, v5, 13, v8")
    e("s_lshl_b32 s43, s30, 1")
    e(f"s_add_u32 s43, s43, {1024 + ct*32*32*2048}")
    e("v_add_u32 v8, s43, v8")
    e("s_waitcnt lgkmcnt(0)")
    for g in range(4):
        d0, d1 = 64+2*g, 65+2*g
        t = 80
        e(f"v_and_b32 v{t}, 0xffff0000, v{d1}")
        e(f"v_lshlrev_b32 v{t+1}, 16, v{d1}")
        e(f"v_and_b32 v{t+2}, 0xffff0000, v{d0}")
        e(f"v_lshlrev_b32 v{t+3}, 16, v{d0}")
        for i in range(4): e(f"v_mul_f32 v{t+i}, v{t+i}, v13")
        e(f"v_cvt_pk_bf16_f32 v{t+4}, v{t}, v{t+1}")
        e(f"v_cvt_pk_bf16_f32 v{t+5}, v{t+2}, v{t+3}")
        e(f"v_cvt_pk_bf16_f32 v{t+6}, v{acc+4*g}, v{acc+4*g+1}")
        e(f"v_cvt_pk_bf16_f32 v{t+7}, v{acc+4*g+2}, v{acc+4*g+3}")
        for p in range(2):
            e(f"v_lshlrev_b32 v{t}, 16, v{t+4+p}")
            e(f"v_and_b32 v{t+1}, 0xffff0000, v{t+4+p}")
            e(f"v_lshlrev_b32 v{t+2}, 16, v{t+6+p}")
            e(f"v_and_b32 v{t+3}, 0xffff0000, v{t+6+p}")
            e(f"v_add_f32 v{t}, v{t}, v{t+2}")
            e(f"v_add_f32 v{t+1}, v{t+1}, v{t+3}")
            o = 90 + 2*g + p
            e(f"v_cvt_pk_bf16_f32 v{o}, v{t}, v{t+1}")
            rowoff = (8*g + 2*p) * 2048
            e(f"v_add_u32 v{100+2*p}, {rowoff}, v8")
            e(f"v_add_u32 v{101+2*p}, {rowoff+2048}, v8")
            e(f"global_store_short v{100+2*p}, v{o}, s[6:7]")
            e(f"global_store_short_d16_hi v{101+2*p}, v{o}, s[6:7]")

def gen_k3():
    e = E()
    e("s_cmp_ge_u32 s2, 256")
    e("s_cbranch_scc1 K3_END")
    e("s_load_dwordx2 s[4:5], s[0:1], 16")
    e("s_load_dwordx2 s[6:7], s[0:1], 80")
    e("s_load_dwordx2 s[8:9], s[0:1], 96")
    e("v_lshrrev_b32 v1, 6, v0")
    e("v_and_b32 v2, 63, v0")
    e("v_readfirstlane_b32 s24, v1")
    e("s_and_b32 s25, s2, 7")
    e("s_lshr_b32 s26, s2, 3")
    e("s_lshl_b32 s27, s25, 2")
    e("s_and_b32 s28, s26, 3")
    e("s_add_u32 s27, s27, s28")
    e("s_lshr_b32 s28, s26, 2")
    e("v_lshlrev_b32 v3, 4, v2")
    e("v_lshrrev_b32 v4, 3, v2")
    e("v_and_b32 v5, 7, v2")
    e("v_bfe_u32 v6, v2, 4, 1")
    e("v_lshlrev_b32 v6, 2, v6")
    e("v_xor_b32 v5, v5, v6")
    e("v_lshlrev_b32 v4, 10, v4")
    e("v_lshl_add_u32 v4, v5, 4, v4")
    e("s_waitcnt lgkmcnt(0)")
    srd(e, 12, 8, 9, 0x800000)
    e("s_lshl_b32 s29, s28, 7")
    e("s_add_u32 s4, s4, s29")
    e("s_addc_u32 s5, s5, 0")
    e("s_mov_b32 s16, s4")
    e("s_and_b32 s17, s5, 0xffff")
    e("s_sub_u32 s18, 524288, s29")
    e("s_mov_b32 s19, 0x20000")
    e("s_lshr_b32 s30, s24, 1")
    e("s_and_b32 s31, s24, 1")
    e("s_lshl_b32 s31, s31, 2")
    e("s_lshl_b32 s32, s27, 1")
    e("s_add_u32 s32, s32, s30")
    e("s_lshl_b32 s32, s32, 5")
    e("s_add_u32 s32, s32, s31")
    e("s_lshl_b32 s32, s32, 10")
    e(f"s_add_u32 s32, s32, {OW}")
    e("s_lshl_b32 s33, s30, 15")
    e("s_lshl_b32 s34, s31, 10")
    e("s_add_u32 s33, s33, s34")
    e("s_lshl_b32 s34, s24, 15")
    e("s_lshl_b32 s35, s24, 12")
    for c in range(4):
        for i in range(4):
            e(f"s_add_u32 m0, s33, {(8*c+i)*1024}")
            e(f"s_add_u32 s36, s32, {(8*c+i)*1024}")
            e("buffer_load_dwordx4 v3, s[12:15], s36 offen lds")
        for i in range(4):
            e(f"s_add_u32 m0, s35, {65536 + (128*c+8*i)*128}")
            e(f"s_add_u32 s36, s34, {(128*c+8*i)*1024}")
            e("buffer_load_dwordx4 v4, s[16:19], s36 offen lds")
    e("s_lshl_b32 s36, s30, 15")
    e("v_add_u32 v6, s36, v3")
    e("v_lshrrev_b32 v7, 5, v2")
    e("v_bfe_u32 v8, v2, 2, 2")
    e("v_lshl_add_u32 v7, v7, 2, v8")
    e("v_bfe_u32 v8, v2, 4, 1")
    e("v_lshlrev_b32 v8, 1, v8")
    e("v_bfe_u32 v9, v2, 1, 1")
    e("v_add_u32 v8, v8, v9")
    e("s_and_b32 s37, s24, 1")
    e("s_lshl_b32 s37, s37, 2")
    e("v_add_u32 v8, s37, v8")
    e("v_bfe_u32 v9, v7, 1, 1")
    e("v_lshlrev_b32 v9, 2, v9")
    e("v_xor_b32 v8, v8, v9")
    e("v_lshlrev_b32 v7, 7, v7")
    e("v_lshl_add_u32 v7, v8, 4, v7")
    e("v_and_b32 v9, 1, v2")
    e("v_lshl_add_u32 v7, v9, 3, v7")
    e("v_add_u32 v7, 0x10000, v7")
    ACC = 16
    def rd(hd):
        b = 32 + 8*(hd % 4)
        e(f"ds_read_b128 v[{b}:{b+3}], v6 offset:{hd*1024}")
        e(f"ds_read_b64_tr_b16 v[{b+4}:{b+5}], v7 offset:{hd*2048}")
        e(f"ds_read_b64_tr_b16 v[{b+6}:{b+7}], v7 offset:{hd*2048+1024}")
    for c in range(4):
        e(f"s_waitcnt vmcnt({8*(3-c)})")
        e("s_barrier")
        rd(8*c); rd(8*c+1)
        for i in range(8):
            hd = 8*c+i
            if i + 2 < 8:
                rd(hd+2); e("s_waitcnt lgkmcnt(6)")
            elif i + 1 < 8: e("s_waitcnt lgkmcnt(3)")
            else: e("s_waitcnt lgkmcnt(0)")
            b = 32 + 8*(hd % 4)
            C = "0" if hd == 0 else f"v[{ACC}:{ACC+15}]"
            e(f"v_mfma_f32_32x32x16_bf16 v[{ACC}:{ACC+15}], v[{b+4}:{b+7}], v[{b}:{b+3}], {C}")
    e.nop(16)
    for i in range(8): e(f"v_cvt_pk_bf16_f32 v{ACC+i}, v{ACC+2*i}, v{ACC+2*i+1}")
    e("v_and_b32 v8, 31, v2")
    e("v_lshlrev_b32 v8, 11, v8")
    e("v_lshrrev_b32 v9, 5, v2")
    e("v_lshl_add_u32 v8, v9, 3, v8")
    e("s_lshl_b32 s36, s27, 6")
    e("s_lshl_b32 s37, s30, 5")
    e("s_add_u32 s36, s36, s37")
    e("s_lshl_b32 s36, s36, 11")
    e("s_lshl_b32 s37, s28, 7")
    e("s_add_u32 s36, s36, s37")
    e("s_and_b32 s37, s24, 1")
    e("s_lshl_b32 s37, s37, 6")
    e("s_add_u32 s36, s36, s37")
    e("v_add_u32 v8, s36, v8")
    for g in range(4): e(f"global_store_dwordx2 v8, v[{ACC+2*g}:{ACC+2*g+1}], s[6:7] offset:{16*g}")
    e.label("K3_END")
    e("s_endpgm")
    return e.text()
```

```python
import sys
from asmlib import *
import gen_k1, gen_k23
HEADER = open("concat_heads__mha_block__ssm_conv_s4d__prompt.s.ref").read().split("; Override launch")[0]
def build(with_conv=True):
    s = HEADER
    s += "; @launch kernel=k1_kernel grid=(512,1,1) block=(256,1,1) lds=81920\n"
    s += f"; @launch kernel=k2_kernel grid=(256,1,1) block=(768,1,1) lds={gen_k23.K2_LDS}\n"
    s += "; @launch kernel=k3_kernel grid=(256,1,1) block=(256,1,1) lds=131072\n"
    s += '.amdgcn_target "amdgcn-amd-amdhsa--gfx950"\n.text\n'
    s += khead("k1_kernel") + gen_k1.gen_k1()
    s += khead("k2_kernel") + gen_k23.gen_k2(with_conv)
    s += khead("k3_kernel") + gen_k23.gen_k3()
    s += '.section .rodata,"a"\n'
    s += kdesc("k1_kernel", 128) + kdesc("k2_kernel", 168) + kdesc("k3_kernel", 64)
    return s
if __name__ == "__main__":
    out = sys.argv[1] if len(sys.argv) > 1 else "concat_heads__mha_block__ssm_conv_s4d__prompt.s"
    open(out, "w").write(build())
    print("written", out)
```

```python
class E:
    def __init__(self):
        self.L = []
        self.uid = 0
    def __call__(self, s=""):
        for line in s.split("\n"):
            line = line.strip()
            if not line: continue
            if line.endswith(":"):
                self.L.append(line)
            else:
                self.L.append("    " + line)
    def label(self, n): self.L.append(n + ":")
    def c(self, s): self.L.append("    ; " + s)
    def nop(self, n):
        while n > 0:
            k = min(n, 16)
            self.L.append(f"    s_nop {k-1}")
            n -= k
    def text(self): return "\n".join(self.L) + "\n"
    def newlabel(self, p="L"):
        self.uid += 1
        return f"{p}_{self.uid}"

def vr(base, n=1):
    return f"v{base}" if n == 1 else f"v[{base}:{base+n-1}]"
def sr(base, n=1):
    return f"s{base}" if n == 1 else f"s[{base}:{base+n-1}]"

def kdesc(name, vgpr, sgpr=96, acc=None):
    if acc is None: acc = (vgpr + 3)//4*4
    return f""".p2align 6
.amdhsa_kernel {name}
  .amdhsa_next_free_vgpr {vgpr}
  .amdhsa_next_free_sgpr {sgpr}
  .amdhsa_accum_offset {acc}
  .amdhsa_group_segment_fixed_size 0
  .amdhsa_kernarg_size 104
  .amdhsa_user_sgpr_count 2
  .amdhsa_user_sgpr_kernarg_segment_ptr 1
  .amdhsa_system_sgpr_workgroup_id_x 1
.end_amdhsa_kernel
"""
def khead(name):
    return f""".globl {name}
.p2align 8
.type {name},@function
{name}:
"""

PROF = {"on": False}
PROF_OFF = 0x2000000
def stamp(e, k):
    if not PROF["on"]: return
    e(f"s_memtime s[{70+2*k}:{71+2*k}]")
def stamp_flush(e, kernel_idx, nst, wave_sgpr="s24"):
    if not PROF["on"]: return
    e("s_memrealtime s[94:95]")
    e("s_load_dwordx2 s[68:69], s[0:1], 96")
    e("s_waitcnt lgkmcnt(0)")
    e("s_lshl_b32 s66, s2, 4")
    e(f"s_add_u32 s66, s66, {wave_sgpr}")
    e("s_lshl_b32 s66, s66, 6")
    e(f"s_add_u32 s66, s66, {PROF_OFF + kernel_idx*0x100000}")
    e("s_add_u32 s68, s68, s66")
    e("s_addc_u32 s69, s69, 0")
    e("v_mov_b32 v60, 0")
    for k in range(nst):
        e(f"v_mov_b32 v61, s{70+2*k}")
        e(f"global_store_dword v60, v61, s[68:69] offset:{4*k}")
    e("v_mov_b32 v61, s94")
    e(f"global_store_dword v60, v61, s[68:69] offset:60")
    e("s_waitcnt vmcnt(0)")
```

```python
from asmlib import *

QF=0; KF=0x200000; VF=0x400000; OW=0x600000; UT=0x800000; KT=0xA00000
KT_CH = 8448
WS_USED = KT + 512*KT_CH

def srd(e, d, base_lo, base_hi, size):
    e(f"s_mov_b32 s{d}, s{base_lo}")
    e(f"s_and_b32 s{d+1}, s{base_hi}, 0xffff")
    e(f"s_mov_b32 s{d+2}, {size}")
    e(f"s_mov_b32 s{d+3}, 0x20000")

def gen_k1():
    e = E()
    e("s_cmp_ge_u32 s2, 512")
    e("s_cbranch_scc1 K1_END")
    e("s_cmp_ge_u32 s2, 256")
    e("s_cbranch_scc1 K1_KGEN")
    gemm(e)
    e("s_endpgm")
    e.label("K1_KGEN")
    kgen(e)
    e.label("K1_END")
    e("s_endpgm")
    return e.text()

def gemm(e):
    NST=16; RING=5
    XSLOT=8192; WBASE=40960; WSLOT=6144
    stamp(e, 0)
    e("s_load_dwordx4 s[4:7], s[0:1], 0")
    e("s_load_dwordx2 s[8:9], s[0:1], 96")
    e("v_lshrrev_b32 v1, 6, v0")
    e("v_and_b32 v2, 63, v0")
    e("v_readfirstlane_b32 s24, v1")
    e("s_and_b32 s25, s2, 7")
    e("s_lshr_b32 s26, s2, 3")
    e("s_lshr_b32 s27, s25, 1")
    e("s_lshl_b32 s27, s27, 2")
    e("s_and_b32 s28, s26, 3")
    e("s_add_u32 s27, s27, s28")
    e("s_and_b32 s28, s25, 1")
    e("s_lshl_b32 s28, s28, 3")
    e("s_lshr_b32 s29, s26, 2")
    e("s_add_u32 s28, s28, s29")
    e("s_cmp_eq_u32 s24, 4")
    e("s_cbranch_scc0 G_COMPUTE")
    e("v_lshrrev_b32 v3, 2, v2")
    e("v_lshlrev_b32 v3, 10, v3")
    e("v_lshrrev_b32 v4, 4, v2")
    e("v_xor_b32 v4, v4, v2")
    e("v_and_b32 v4, 3, v4")
    e("v_lshl_add_u32 v3, v4, 4, v3")
    for i in range(6):
        e(f"v_add_u32 v6, {64*i}, v2")
        e("v_mul_u32_u24 v7, 171, v6")
        e("v_lshrrev_b32 v7, 11, v7")
        e("v_mul_u32_u24 v8, 12, v7")
        e("v_sub_u32 v8, v6, v8")
        e("v_mul_u32_u24 v7, 3072, v7")
        e("v_lshrrev_b32 v9, 2, v8")
        e("v_lshl_add_u32 v7, v9, 10, v7")
        e("v_and_b32 v8, 3, v8")
        e(f"v_lshl_add_u32 v{10+i}, v8, 4, v7")
    e("s_waitcnt lgkmcnt(0)")
    e("s_lshl_b32 s29, s27, 17")
    e("s_add_u32 s4, s4, s29")
    e("s_addc_u32 s5, s5, 0")
    srd(e, 12, 4, 5, 131072)
    e("s_lshl_b32 s29, s28, 6")
    e("s_add_u32 s6, s6, s29")
    e("s_addc_u32 s7, s7, 0")
    e("s_mov_b32 s16, s6")
    e("s_and_b32 s17, s7, 0xffff")
    e("s_sub_u32 s18, 1572864, s29")
    e("s_mov_b32 s19, 0x20000")
    stamp(e, 1)
    def dma(st):
        slot = st % RING
        for i in range(8):
            e(f"s_mov_b32 m0, {slot*XSLOT + i*1024}")
            e(f"s_mov_b32 s32, {st*64 + i*16384}")
            e(f"buffer_load_dwordx4 v3, s[12:15], s32 offen lds")
        e(f"s_mov_b32 s33, {st*98304}")
        for i in range(6):
            e(f"s_mov_b32 m0, {WBASE + slot*WSLOT + i*1024}")
            e("s_nop 0")
            e(f"buffer_load_dwordx4 v{10+i}, s[16:19], s33 offen lds")
    for st in range(4): dma(st)
    stamp(e, 2)
    for k in range(NST):
        issued = min(k + 3, NST - 1)
        e(f"s_waitcnt vmcnt({14*(issued-k)})")
        e("s_barrier")
        if k == 0: stamp(e, 3)
        if k + 4 < NST: dma(k + 4)
    stamp(e, 4)
    stamp_flush(e, 0, 5)
    e("s_endpgm")
    e.label("G_COMPUTE")
    e("v_and_b32 v9, 31, v2")
    e("v_lshrrev_b32 v10, 5, v2")
    e("v_lshrrev_b32 v11, 2, v9")
    e("v_xor_b32 v11, v11, v10")
    e("v_and_b32 v11, 3, v11")
    e("v_lshlrev_b32 v6, 6, v9")
    e("v_lshl_add_u32 v6, v11, 4, v6")
    e("s_lshl_b32 s29, s24, 11")
    e("v_add_u32 v6, s29, v6")
    e("v_xor_b32 v7, 32, v6")
    e("v_bfe_u32 v11, v2, 2, 2")
    e("v_lshl_add_u32 v11, v10, 3, v11")
    e("v_mul_u32_u24 v8, 192, v11")
    e("v_bfe_u32 v11, v2, 4, 1")
    e("v_lshl_add_u32 v8, v11, 5, v8")
    e("v_and_b32 v11, 3, v2")
    e("v_lshl_add_u32 v8, v11, 3, v8")
    e(f"v_add_u32 v8, {WBASE}, v8")
    e("v_lshlrev_b32 v12, 4, v2")
    e("v_and_b32 v11, 19, v9")
    e("v_and_b32 v13, 4, v9")
    e("v_lshl_or_b32 v11, v13, 1, v11")
    e("v_and_b32 v13, 8, v9")
    e("v_lshrrev_b32 v13, 1, v13")
    e("v_or_b32 v11, v11, v13")
    e("v_lshl_add_u32 v11, v10, 5, v11")
    e("v_lshlrev_b32 v13, 4, v11")
    e("v_lshrrev_b32 v11, 4, v9")
    e("v_lshlrev_b32 v14, 16, v11")
    e("v_lshl_add_u32 v14, v10, 8, v14")
    e("v_and_b32 v11, 15, v9")
    e("v_lshl_add_u32 v14, v11, 4, v14")
    e("s_waitcnt lgkmcnt(0)")
    srd(e, 20, 8, 9, 0x600000)
    FR = [16, 48]
    ACC = [80, 96, 112]
    def frag_reads(st):
        slot = st % RING; b = FR[st & 1]
        L = []
        for ks in range(2):
            L.append(f"ds_read_b128 v[{b+4*ks}:{b+4*ks+3}], v{6+ks} offset:{slot*XSLOT}")
            for nt in range(3):
                r = b + 8 + (ks*3+nt)*4
                off = slot*WSLOT + ks*3072 + nt*64
                L.append(f"ds_read_b64_tr_b16 v[{r}:{r+1}], v8 offset:{off}")
                L.append(f"ds_read_b64_tr_b16 v[{r+2}:{r+3}], v8 offset:{off+768}")
        return L
    def mfmas(st):
        b = FR[st & 1]; L = []
        for ks in range(2):
            X = f"v[{b+4*ks}:{b+4*ks+3}]"
            for nt in range(3):
                r = b + 8 + (ks*3+nt)*4
                W = f"v[{r}:{r+3}]"
                a = ACC[nt]; A = f"v[{a}:{a+15}]"
                C = "0" if (st == 0 and ks == 0) else A
                if nt < 2: L.append(f"v_mfma_f32_32x32x16_bf16 {A}, {W}, {X}, {C}")
                else:      L.append(f"v_mfma_f32_32x32x16_bf16 {A}, {X}, {W}, {C}")
        return L
    stamp(e, 1)
    e("s_barrier")
    stamp(e, 2)
    for l in frag_reads(0): e(l)
    for st in range(NST):
        if st + 1 < NST:
            e(f"s_waitcnt lgkmcnt(0)")
            e("s_barrier")
            R = frag_reads(st + 1); M = mfmas(st)
            ri = 0
            for mi, m in enumerate(M):
                e(m)
                k = 3 if mi < 4 else 1
                for _ in range(k):
                    if ri < len(R): e(R[ri]); ri += 1
            while ri < len(R): e(R[ri]); ri += 1
        else:
            e("s_waitcnt lgkmcnt(0)")
            for m in mfmas(st): e(m)
    stamp(e, 3)
    e.nop(16)
    e("s_mov_b32 s33, 0x3eb8aa3b")
    for i in range(16): e(f"v_mul_f32 v{ACC[0]+i}, s33, v{ACC[0]+i}")
    e("s_lshl_b32 s36, s28, 7")
    e("s_lshl_b32 s37, s27, 2")
    e("s_add_u32 s36, s36, s37")
    e("s_add_u32 s36, s36, s24")
    e("s_lshl_b32 s36, s36, 10")
    P = 16
    for nt in (1, 2, 0):
        a = ACC[nt]
        for i in range(8): e(f"v_cvt_pk_bf16_f32 v{P+8*nt+i}, v{a+2*i}, v{a+2*i+1}")
        if nt == 0:
            e(f"s_add_u32 s37, s36, {QF}")
            e(f"buffer_store_dwordx4 v[{P}:{P+3}], v12, s[20:23], s37 offen")
            e(f"s_add_u32 s38, s36, {QF+65536}")
            e(f"buffer_store_dwordx4 v[{P+4}:{P+7}], v12, s[20:23], s38 offen")
        elif nt == 1:
            e(f"s_add_u32 s39, s36, {KF}")
            e(f"buffer_store_dwordx4 v[{P+8}:{P+11}], v13, s[20:23], s39 offen")
            e(f"s_add_u32 s40, s36, {KF+65536}")
            e(f"buffer_store_dwordx4 v[{P+12}:{P+15}], v13, s[20:23], s40 offen")
        else:
            e(f"s_add_u32 s41, s36, {VF}")
            e(f"buffer_store_dwordx4 v[{P+16}:{P+19}], v14, s[20:23], s41 offen")
            e(f"s_add_u32 s42, s36, {VF+512}")
            e(f"buffer_store_dwordx4 v[{P+20}:{P+23}], v14, s[20:23], s42 offen")
    stamp(e, 4)
    if PROF["on"]: e("s_waitcnt vmcnt(0)")
    stamp(e, 5)
    stamp_flush(e, 0, 6)

def cmul(e, d, z, w):
    e(f"v_pk_mul_f32 v[{d}:{d+1}], v[{z}:{z+1}], v[{w}:{w+1}] op_sel:[0,0] op_sel_hi:[0,1]")
    e(f"v_pk_fma_f32 v[{d}:{d+1}], v[{z}:{z+1}], v[{w}:{w+1}], v[{d}:{d+1}] op_sel:[1,1,0] op_sel_hi:[1,0,1] neg_lo:[1,0,0]")

def cexp(e, d, alpha, beta, mult, t0, t1):
    if mult is None:
        e(f"v_exp_f32 v{t0}, v{alpha}")
        e(f"v_fract_f32 v{t1}, v{beta}")
    else:
        e(f"v_mul_f32 v{t0}, {mult}, v{alpha}")
        e(f"v_mul_f32 v{t1}, {mult}, v{beta}")
        e(f"v_exp_f32 v{t0}, v{t0}")
        e(f"v_fract_f32 v{t1}, v{t1}")
    e("s_nop 0")
    e(f"v_cos_f32 v{d}, v{t1}")
    e(f"v_sin_f32 v{d+1}, v{t1}")
    e("s_nop 0")
    e(f"v_mul_f32 v{d}, v{d}, v{t0}")
    e(f"v_mul_f32 v{d+1}, v{d+1}, v{t0}")

def kgen(e):
    PITCH=528; CH=70*PITCH
    KST=4352
    stamp(e, 0)
    e("s_load_dwordx4 s[4:7], s[0:1], 32")
    e("s_load_dwordx4 s[8:11], s[0:1], 48")
    e("s_load_dwordx2 s[12:13], s[0:1], 64")
    e("s_load_dwordx2 s[14:15], s[0:1], 24")
    e("s_load_dwordx2 s[16:17], s[0:1], 96")
    e("v_lshrrev_b32 v1, 6, v0")
    e("v_and_b32 v2, 63, v0")
    e("v_readfirstlane_b32 s24, v1")
    e("s_sub_u32 s25, s2, 256")
    e("s_and_b32 s26, s25, 7")
    e("s_lshr_b32 s27, s25, 3")
    e("s_lshl_b32 s28, s26, 6")
    e("s_lshl_b32 s29, s27, 1")
    e("s_add_u32 s28, s28, s29")
    e("s_cmp_eq_u32 s24, 4")
    e("s_cbranch_scc1 KG_UT")
    e("s_lshr_b32 s30, s24, 1")
    e("s_and_b32 s31, s24, 1")
    e("s_add_u32 s32, s28, s30")
    e("s_lshl_b32 s33, s32, 7")
    e("s_lshl_b32 s34, s31, 6")
    e("s_add_u32 s33, s33, s34")
    e("v_add_u32 v3, s33, v2")
    e("v_lshlrev_b32 v3, 1, v3")
    e("s_lshl_b32 s33, s32, 1")
    e("v_mov_b32 v4, s33")
    e("s_waitcnt lgkmcnt(0)")
    e("global_load_ushort v10, v3, s[4:5]")
    e("global_load_ushort v11, v3, s[6:7]")
    e("global_load_ushort v12, v3, s[8:9]")
    e("global_load_ushort v13, v3, s[10:11]")
    e("global_load_ushort v14, v4, s[12:13]")
    e("s_waitcnt vmcnt(0)")
    stamp(e, 1)
    LOG2E="0x3fb8aa3b"; INV2PI="0x3e22f983"
    for r in (10,11,12,13,14): e(f"v_lshlrev_b32 v{r}, 16, v{r}")
    e(f"v_mul_f32 v14, {LOG2E}, v14")
    e(f"v_mul_f32 v10, {LOG2E}, v10")
    e("v_exp_f32 v14, v14")
    e("v_exp_f32 v10, v10")
    e("s_nop 0")
    e("v_cvt_pk_bf16_f32 v14, v14, v14")
    e("v_cvt_pk_bf16_f32 v10, v10, v10")
    e("v_lshlrev_b32 v14, 16, v14")
    e("v_lshlrev_b32 v10, 16, v10")
    e("v_mul_f32 v10, v10, v14")
    e("v_mul_f32 v11, v11, v14")
    e(f"v_mul_f32 v10, 0xbfb8aa3b, v10")
    e(f"v_mul_f32 v11, {INV2PI}, v11")
    e("v_mul_f32 v12, v12, v14")
    e("v_mul_f32 v13, v13, v14")
    e("v_add_f32 v12, v12, v12")
    e("v_add_f32 v13, v13, v13")
    e(f"s_mul_i32 s36, s30, {CH}")
    e("s_lshl_b32 s37, s31, 8")
    e("s_add_u32 s36, s36, s37")
    e("v_lshlrev_b32 v15, 2, v2")
    e("v_add_u32 v15, s36, v15")
    W1=16; W2=18; W32=20; W64=22; W1K=24
    cexp(e, W1, 10, 11, None, 4, 5)
    cexp(e, W32, 10, 11, "0x42000000", 4, 5)
    cexp(e, W1K, 10, 11, "0x44800000", 4, 5)
    cmul(e, W2, W1, W1)
    cmul(e, W64, W32, W32)
    def wrY(row, z):
        e(f"v_cvt_pk_bf16_f32 v{z_tmp(row)}, v{z}, -v{z+1}")
        e(f"ds_write_b32 v15, v{z_tmp(row)} offset:{row*PITCH}")
    def wrX(row, z):
        e(f"v_cvt_pk_bf16_f32 v{z_tmp(row)}, v{z}, v{z+1}")
        e(f"ds_write_b32 v15, v{z_tmp(row)} offset:{row*PITCH}")
    def z_tmp(row): return 60 + (row % 8)
    e("v_mov_b32 v28, 1.0")
    e("v_mov_b32 v29, 0")
    e(f"v_mov_b32 v32, v{W1}")
    e(f"v_mov_b32 v33, v{W1+1}")
    e("v_mov_b32 v36, v12")
    e("v_mov_b32 v37, v13")
    cmul(e, 40, 12, W32)
    wrY(32+0, 28); wrY(32+1, 32); wrX(0, 36); wrX(1, 40)
    ye, yo, xe, xo = 28, 32, 36, 40
    saved = {8:44, 16:46, 24:48, 32:50}
    def cm1(d,z,w): e(f"v_pk_mul_f32 v[{d}:{d+1}], v[{z}:{z+1}], v[{w}:{w+1}] op_sel:[0,0] op_sel_hi:[0,1]")
    def cm2(d,z,w): e(f"v_pk_fma_f32 v[{d}:{d+1}], v[{z}:{z+1}], v[{w}:{w+1}], v[{d}:{d+1}] op_sel:[1,1,0] op_sel_hi:[1,0,1] neg_lo:[1,0,0]")
    pend = []
    for k in range(1, 17):
        j = 2*k
        nye = saved.get(j, (30 if ye in (28,44,46,48,50) else 28))
        ops = [(nye, ye, W2)]
        if k < 16:
            nyo = 34 if yo == 32 else 32
            nxe = 38 if xe == 36 else 36
            nxo = 42 if xo == 40 else 40
            ops += [(nyo, yo, W2), (nxe, xe, W64), (nxo, xo, W64)]
        for o in ops: cm1(*o)
        for f in pend: f()
        pend = []
        for o in ops: cm2(*o)
        pend.append(lambda row=32+j, z=nye: wrY(row, z))
        ye = nye
        if k < 16:
            pend.append(lambda row=32+j+1, z=nyo: wrY(row, z))
            pend.append(lambda row=j, z=nxe: wrX(row, z))
            pend.append(lambda row=j+1, z=nxo: wrX(row, z))
            yo, xe, xo = nyo, nxe, nxo
    for f in pend: f()
    wrY(65, W1K)
    for i, rho in enumerate((8,16,24,32)):
        cmul(e, 52+2*(i&1), saved[rho], W1K)
        wrY(66+i, 52+2*(i&1))
    e("v_and_b32 v5, 31, v2")
    e("v_lshrrev_b32 v6, 5, v2")
    e(f"s_mul_i32 s36, s30, {CH}")
    e("v_lshlrev_b32 v7, 4, v6")
    e("v_add_u32 v7, s36, v7")
    e(f"v_mul_u32_u24 v8, {PITCH}, v5")
    e("v_add_u32 v16, v7, v8")
    e("v_cvt_f32_u32 v9, v5")
    def rho(dst, base):
        e(f"v_add_f32 v{dst}, {base}, v9")
        e(f"v_cvt_pk_bf16_f32 v{dst}, v{dst}, v{dst}")
        e(f"v_lshlrev_b32 v{dst}, 16, v{dst}")
        e(f"v_subrev_f32 v{dst}, {base}, v{dst}")
        e(f"v_cvt_u32_f32 v{dst}, v{dst}")
    e("s_cmp_eq_u32 s31, 0")
    e("s_cbranch_scc0 KG_NH1")
    e("v_add_u32 v17, 32, v5")
    rho(18, "0x43800000")
    e("v_add_u32 v18, 32, v18")
    e("s_branch KG_NH2")
    e.label("KG_NH1")
    rho(17, "0x44000000")
    e("v_add_u32 v17, 32, v17")
    rho(18, "0x44800000")
    e("v_lshrrev_b32 v18, 3, v18")
    e("v_add_u32 v18, 65, v18")
    e.label("KG_NH2")
    e(f"v_mul_u32_u24 v17, {PITCH}, v17")
    e(f"v_mul_u32_u24 v18, {PITCH}, v18")
    e("v_add_u32 v17, v7, v17")
    e("v_add_u32 v18, v7, v18")
    stamp(e, 2)
    e("s_waitcnt lgkmcnt(0)")
    e("s_barrier")
    stamp(e, 3)
    def rd(ks):
        b = 20 + 12*(ks % 3)
        e(f"ds_read_b128 v[{b}:{b+3}], v16 offset:{32*ks}")
        e(f"ds_read_b128 v[{b+4}:{b+7}], v17 offset:{32*ks}")
        e(f"ds_read_b128 v[{b+8}:{b+11}], v18 offset:{32*ks}")
    rd(0); rd(1)
    for ks in range(16):
        if ks + 2 < 16:
            rd(ks+2); e("s_waitcnt lgkmcnt(6)")
        elif ks + 1 < 16: e("s_waitcnt lgkmcnt(3)")
        else: e("s_waitcnt lgkmcnt(0)")
        b = 20 + 12*(ks % 3)
        C = "0" if ks == 0 else "v[64:79]"
        e(f"v_mfma_f32_32x32x16_bf16 v[64:79], v[{b+4}:{b+7}], v[{b}:{b+3}], {C}")
        C = "0" if ks == 0 else "v[80:95]"
        e(f"v_mfma_f32_32x32x16_bf16 v[80:95], v[{b+8}:{b+11}], v[{b}:{b+3}], {C}")
    stamp(e, 4)
    e("s_barrier")
    e.nop(12)
    e(f"s_mul_i32 s36, s30, {KST}")
    e("v_lshlrev_b32 v7, 6, v5")
    e("v_lshl_add_u32 v7, v6, 3, v7")
    e("v_add_u32 v7, s36, v7")
    e("v_add_u32 v7, 64, v7")
    for a in (64, 80):
        for i in range(8): e(f"v_cvt_pk_bf16_f32 v{a+i}, v{a+2*i}, v{a+2*i+1}")
    e("s_mov_b32 s40, 0xff")
    e("s_mov_b32 s42, 0xff00")
    e("s_mov_b32 s44, 0")
    e("s_cmp_eq_u32 s31, 0")
    e("s_cbranch_scc1 KG_MSK")
    e("s_mov_b32 s40, 0xffff0000")
    e("s_mov_b32 s42, -1")
    e("s_mov_b32 s44, 2048")
    e.label("KG_MSK")
    e("s_mov_b32 s41, s40")
    e("s_mov_b32 s43, s42")
    e("v_add_u32 v8, s44, v7")
    e("s_mov_b64 exec, s[40:41]")
    for g in range(4): e(f"ds_write_b64 v7, v[{64+2*g}:{65+2*g}] offset:{16*g}")
    e("s_mov_b64 exec, s[42:43]")
    for g in range(4): e(f"ds_write_b64 v8, v[{80+2*g}:{81+2*g}] offset:{16*g}")
    e("s_mov_b64 exec, -1")
    e("v_mov_b32 v20, 0")
    e("v_lshlrev_b32 v21, 2, v2")
    e("v_add_u32 v21, s36, v21")
    e("s_mov_b32 s40, 0xffff")
    e("s_mov_b32 s41, 0")
    e("s_mov_b64 exec, s[40:41]")
    e("ds_write_b32 v21, v20")
    e("s_mov_b32 s40, -1")
    e("s_mov_b32 s41, 0xffff")
    e("s_mov_b64 exec, s[40:41]")
    e("ds_write_b32 v21, v20 offset:4160")
    e("s_mov_b64 exec, -1")
    e("s_waitcnt lgkmcnt(0)")
    e("s_barrier")
    e("s_lshl_b32 s37, s31, 6")
    e("v_add_u32 v5, s37, v2")
    e("v_lshlrev_b32 v6, 4, v5")
    e("v_add_u32 v7, s36, v6")
    e(f"s_mul_i32 s38, s32, {KT_CH}")
    e(f"s_add_u32 s38, s38, {KT}")
    e("s_add_u32 s16, s16, s38")
    e("s_addc_u32 s17, s17, 0")
    for it in range(3):
        b = 20 + 12*it
        if it == 2:
            e("v_cmp_gt_u32 vcc, 8, v5")
            e("s_and_saveexec_b64 s[40:41], vcc")
            e("s_cbranch_execz KG_RB_SKIP")
        e(f"ds_read_b128 v[{b}:{b+3}], v7 offset:{2048*it}")
        e(f"ds_read_b32 v{b+4}, v7 offset:{2048*it+16}")
        e("s_waitcnt lgkmcnt(0)")
        for i in range(4): e(f"v_alignbit_b32 v{b+6+i}, v{b+i+1}, v{b+i}, 16")
        if it < 2:
            e(f"global_store_dwordx4 v6, v[{b}:{b+3}], s[16:17] offset:{2048*it}")
        else:
            e("v_add_u32 v8, 0x1000, v6")
            e(f"global_store_dwordx4 v8, v[{b}:{b+3}], s[16:17]")
        e(f"v_add_u32 v{b+10}, {4224+2048*it}, v6")
        e(f"global_store_dwordx4 v{b+10}, v[{b+6}:{b+9}], s[16:17]")
    e.label("KG_RB_SKIP")
    e("s_mov_b64 exec, -1")
    e("s_branch KG_DONE")
    e.label("KG_UT")
    e("s_and_b32 s36, s27, 3")
    e("s_lshr_b32 s37, s27, 2")
    e("v_and_b32 v5, 7, v2")
    e("v_lshrrev_b32 v6, 3, v2")
    e("s_lshl_b32 s38, s37, 8")
    e("s_lshl_b32 s39, s36, 3")
    e("s_add_u32 s38, s38, s39")
    e("v_lshlrev_b32 v7, 5, v5")
    e("v_add_u32 v7, s38, v7")
    e("v_lshlrev_b32 v7, 10, v7")
    e("s_lshl_b32 s38, s26, 7")
    e("v_lshl_add_u32 v7, v6, 4, v7")
    e("v_add_u32 v7, s38, v7")
    e("v_add_u32 v8, 0x1000, v7")
    e("s_lshl_b32 s38, s26, 18")
    e("s_lshl_b32 s39, s36, 10")
    e("s_add_u32 s38, s38, s39")
    e("s_lshl_b32 s39, s37, 7")
    e("s_add_u32 s38, s38, s39")
    e(f"s_add_u32 s38, s38, {UT}")
    e("v_lshlrev_b32 v56, 15, v6")
    e("v_lshl_add_u32 v56, v5, 4, v56")
    e("v_add_u32 v56, s38, v56")
    e("s_waitcnt lgkmcnt(0)")
    for t in range(8):
        if t < 4: e(f"global_load_dwordx4 v[{96+4*t}:{99+4*t}], v7, s[14:15] offset:{1024*t}")
        else:     e(f"global_load_dwordx4 v[{96+4*t}:{99+4*t}], v8, s[14:15] offset:{1024*(t-4)}")
    e("s_mov_b32 s40, 0x05040100")
    e("s_mov_b32 s41, 0x07060302")
    e("s_waitcnt vmcnt(0)")
    for k in range(8):
        sel = "s40" if k % 2 == 0 else "s41"
        o = 20 + 4*(k % 4)
        for j in range(4):
            lo = 96 + 4*(7-2*j) + (k >> 1)
            hi = 96 + 4*(6-2*j) + (k >> 1)
            e(f"v_perm_b32 v{o+j}, v{hi}, v{lo}, {sel}")
        e(f"global_store_dwordx4 v56, v[{o}:{o+3}], s[16:17]")
        if k < 7: e("v_add_u32 v56, 0x1000, v56")
    e.label("KG_DONE")
    stamp(e, 5)
    if PROF["on"]: e("s_waitcnt vmcnt(0)")
    stamp(e, 6)
    stamp_flush(e, 0, 7)
```

```python
from asmlib import *
from gen_k1 import QF,KF,VF,OW,UT,KT,KT_CH,srd

UB = 131072
MB = UB + 12288
EXB = UB
FLG = UB + 20480
K2_LDS = FLG + 64

def gen_k2(with_conv=True):
    e = E()
    e("s_cmp_ge_u32 s2, 256")
    e("s_cbranch_scc1 K2_END")
    stamp(e, 0)
    e("s_load_dwordx2 s[8:9], s[0:1], 96")
    e("s_load_dwordx4 s[4:7], s[0:1], 72")
    e("v_lshrrev_b32 v1, 6, v0")
    e("v_and_b32 v2, 63, v0")
    e("v_readfirstlane_b32 s24, v1")
    e("s_and_b32 s25, s2, 7")
    e("s_lshr_b32 s26, s2, 3")
    e("s_cmp_ge_u32 s24, 8")
    e("s_cbranch_scc1 K2_CONV")
    attn(e)
    e("s_endpgm")
    e.label("K2_CONV")
    if with_conv:
        conv(e)
    else:
        e("s_barrier"); e("s_barrier")
    e.label("K2_END")
    e("s_endpgm")
    return e.text()

S = [[16,32],[48,64]]
O = [80,96]
Q = [112,116]
KR = [120,124]
VR = [[128,132],[136,140]]
IDX = 144
VK, VV = 145, 146
T0 = 148

TB2 = 3

def attn(e):
    e("s_lshl_b32 s27, s25, 2")
    e("s_and_b32 s28, s26, 3")
    e("s_add_u32 s27, s27, s28")
    e("s_lshr_b32 s28, s26, 2")
    e("s_and_b32 s29, s24, 3")
    e("s_lshr_b32 s30, s24, 2")
    e("v_lshlrev_b32 v3, 4, v2")
    e("s_cmp_lg_u32 s24, 0")
    e("s_cbranch_scc1 AT_NOFLG")
    e("v_mov_b32 v4, 0")
    e(f"v_mov_b32 v5, {FLG}")
    e("ds_write_b32 v5, v4")
    e("ds_write_b32 v5, v4 offset:4")
    e("ds_write_b32 v5, v4 offset:8")
    e.label("AT_NOFLG")
    e("s_waitcnt lgkmcnt(0)")
    srd(e, 12, 8, 9, 0x800000)
    e("s_lshl_b32 s31, s27, 6")
    e("s_lshl_b32 s32, s28, 3")
    e("s_add_u32 s32, s32, s31")
    e("s_lshl_b32 s33, s29, 1")
    e("s_add_u32 s32, s32, s33")
    e("s_lshl_b32 s32, s32, 10")
    e(f"buffer_load_dwordx4 v[{Q[0]}:{Q[0]+3}], v3, s[12:15], s32 offen")
    e(f"buffer_load_dwordx4 v[{Q[1]}:{Q[1]+3}], v3, s[12:15], s32 offen offset:1024")
    e("s_lshl_b32 s34, s30, 16")
    e(f"v_add_u32 v{VK}, s34, v3")
    e("v_and_b32 v4, 15, v2")
    e("v_lshrrev_b32 v5, 5, v2")
    e("v_lshlrev_b32 v4, 4, v4")
    e("v_lshl_add_u32 v4, v5, 8, v4")
    e(f"v_add_u32 v{VV}, s34, v4")
    e(f"v_mov_b32 v{IDX}, 0xdddd")
    e("v_and_b32 v4, 31, v2")
    e("v_cmp_eq_u32 vcc, 16, v4")
    e("v_cmp_eq_u32 s[44:45], 20, v4")
    e("s_nop 1")
    e("s_or_b64 vcc, vcc, s[44:45]")
    e("v_mov_b32 v5, 0x3f803f80")
    e("v_mov_b32 v6, 0")
    e("s_nop 1")
    e("v_cndmask_b32 v6, v6, v5, vcc")
    for b in range(2):
        for hf in range(2):
            for i in range(4): e(f"v_mov_b32 v{VR[b][hf]+i}, v6")
    e("s_mov_b32 s46, 0xffff")
    e("s_mov_b32 s47, 0xffff")
    for t in range(2):
        for i in range(16): e(f"v_mov_b32 v{O[t]+i}, 0")
    def ldK(t):  return f"ds_read_b128 v[{KR[t&1]}:{KR[t&1]+3}], v{VK} offset:{t*1024}"
    def ldV(t):
        b = t & 1
        return ["s_mov_b64 exec, s[46:47]",
                f"ds_read_b128 v[{VR[b][0]}:{VR[b][0]+3}], v{VV} offset:{32768+t*1024}",
                f"ds_read_b128 v[{VR[b][1]}:{VR[b][1]+3}], v{VV} offset:{32768+t*1024+512}",
                "s_mov_b64 exec, -1"]
    def qk(t, tile):
        s = S[t&1][tile]
        return f"v_mfma_f32_32x32x16_bf16 v[{s}:{s+15}], v[{KR[t&1]}:{KR[t&1]+3}], v[{Q[tile]}:{Q[tile]+3}], 0"
    def pv(t, tile, hf):
        s = S[t&1][tile] + 8*hf; v = VR[t&1][hf]; o = O[tile]
        return f"v_smfmac_f32_32x32x32_bf16 v[{o}:{o+15}], v[{v}:{v+3}], v[{s}:{s+7}], v{IDX}"
    stamp(e, 1)
    e("s_waitcnt vmcnt(0) lgkmcnt(0)")
    e("s_barrier")
    stamp(e, 2)
    e("s_setprio 1")
    e(ldK(0)); e(ldK(1))
    for l in ldV(0): e(l)
    e("s_waitcnt lgkmcnt(0)")
    e(qk(0,0)); e(qk(0,1))
    e.nop(12)
    NT = 32
    for t in range(NT):
        sa, sb = S[t&1]
        ex = lambda r: e(f"v_exp_f32 v{r}, v{r}")
        if t == TB2:
            stamp(e, 3)
            e("s_barrier")
            stamp(e, 4)
        e("s_waitcnt lgkmcnt(0)")
        if t+1 < NT: e(qk(t+1, 0))
        for i in range(0,4): ex(sa+i)
        if t > 0: e(pv(t-1, 1, 1))
        if t+2 < NT: e(ldK(t+2))
        if t+1 < NT:
            for l in ldV(t+1): e(l)
        for i in range(4,9): ex(sa+i)
        if t+1 < NT: e(qk(t+1, 1))
        for i in range(9,14): ex(sa+i)
        e(pv(t, 0, 0))
        for i in range(14,16): ex(sa+i)
        for i in range(0,3): ex(sb+i)
        e(pv(t, 0, 1))
        for i in range(3,10): ex(sb+i)
        e(pv(t, 1, 0))
        for i in range(10,16): ex(sb+i)
    e("s_nop 1")
    e(pv(NT-1, 1, 1))
    e("s_setprio 0")
    stamp(e, 5)
    e.nop(16)
    finalize(e, check=True)
    stamp(e, 6)
    if PROF["on"]: e("s_waitcnt vmcnt(0)")
    stamp(e, 7)
    stamp_flush(e, 1, 8)
    e("s_endpgm")
    e.label("AT_FALLBACK")
    fallback(e)
    finalize(e, check=False)

def finalize(e, check):
    sfx = "C" if check else "F"
    if check:
        e(f"v_mov_b32 v{T0}, 0")
        for t in range(2):
            for i in range(8): e(f"v_fma_f32 v{T0}, v{O[t]+i}, 0, v{T0}")
        e("s_mov_b32 s48, 0x21800000")
        e("s_mov_b32 s49, 0x5d800000")
        e(f"v_cmp_u_f32 vcc, v{T0}, v{T0}")
        for t in range(2):
            e(f"v_cmp_nle_f32 s[50:51], s48, v{O[t]+8}")
            e(f"v_cmp_nge_f32 s[58:59], s49, v{O[t]+8}")
            e("s_nop 1")
            e("s_or_b64 vcc, vcc, s[50:51]")
            e("s_or_b64 vcc, vcc, s[58:59]")
        e("s_cmp_eq_u64 vcc, 0")
        e(f"s_cbranch_scc1 AT_OK{sfx}")
        e("v_mov_b32 v4, 1")
        e(f"v_mov_b32 v5, {FLG}")
        e("ds_write_b32 v5, v4")
        e.label(f"AT_OK{sfx}")
    e("s_waitcnt lgkmcnt(0)")
    e("s_barrier")
    e("s_mul_i32 s52, s24, 2304")
    e(f"s_add_u32 s52, s52, {EXB}")
    e("v_lshlrev_b32 v4, 4, v2")
    e("v_add_u32 v4, s52, v4")
    e("v_lshlrev_b32 v5, 2, v2")
    e("v_add_u32 v5, s52, v5")
    e("s_cmp_eq_u32 s30, 0")
    e(f"s_cbranch_scc1 AT_SB{sfx}")
    e(f"ds_write_b128 v4, v[{O[0]}:{O[0]+3}]")
    e(f"ds_write_b128 v4, v[{O[0]+4}:{O[0]+7}] offset:1024")
    e(f"ds_write_b32 v5, v{O[0]+8} offset:2048")
    e("s_nop 1")
    for i in range(9): e(f"v_mov_b32 v{O[0]+i}, v{O[1]+i}")
    e(f"s_branch AT_SD{sfx}")
    e.label(f"AT_SB{sfx}")
    e(f"ds_write_b128 v4, v[{O[1]}:{O[1]+3}]")
    e(f"ds_write_b128 v4, v[{O[1]+4}:{O[1]+7}] offset:1024")
    e(f"ds_write_b32 v5, v{O[1]+8} offset:2048")
    e.label(f"AT_SD{sfx}")
    e("s_waitcnt lgkmcnt(0)")
    e("s_barrier")
    e("s_xor_b32 s53, s24, 4")
    e("s_mul_i32 s53, s53, 2304")
    e(f"s_add_u32 s53, s53, {EXB}")
    e("v_lshlrev_b32 v4, 4, v2")
    e("v_add_u32 v4, s53, v4")
    e("v_lshlrev_b32 v5, 2, v2")
    e("v_add_u32 v5, s53, v5")
    e(f"ds_read_b128 v[{T0}:{T0+3}], v4")
    e(f"ds_read_b128 v[{T0+4}:{T0+7}], v4 offset:1024")
    e(f"ds_read_b32 v{T0+8}, v5 offset:2048")
    if check:
        e(f"v_mov_b32 v6, {FLG}")
        e(f"ds_read_b32 v7, v6")
    e("s_waitcnt lgkmcnt(0)")
    if check:
        e("v_readfirstlane_b32 s54, v7")
        e("s_nop 3")
        e("s_cmp_lg_u32 s54, 0")
        e("s_cbranch_scc1 AT_FALLBACK")
    for i in range(9): e(f"v_add_f32 v{O[0]+i}, v{O[0]+i}, v{T0+i}")
    e(f"v_rcp_f32 v{T0}, v{O[0]+8}")
    e("s_nop 0")
    for i in range(8): e(f"v_mul_f32 v{O[0]+i}, v{O[0]+i}, v{T0}")
    for i in range(4): e(f"v_cvt_pk_bf16_f32 v{T0+4+i}, v{O[0]+2*i}, v{O[0]+2*i+1}")
    e("s_lshl_b32 s55, s28, 3")
    e("s_lshl_b32 s56, s29, 1")
    e("s_add_u32 s55, s55, s56")
    e("s_add_u32 s55, s55, s30")
    e("s_lshl_b32 s55, s55, 5")
    e("s_add_u32 s55, s55, s27")
    e("s_lshl_b32 s55, s55, 10")
    e(f"s_add_u32 s55, s55, {OW}")
    e(f"buffer_store_dwordx4 v[{T0+4}:{T0+7}], v3, s[12:15], s55 offen")

def fallback(e):
    M = [T0+10, T0+11]
    e(f"v_mov_b32 v{M[0]}, 0xff800000")
    e(f"v_mov_b32 v{M[1]}, 0xff800000")
    e("v_lshlrev_b32 v4, 4, v2")
    e("s_mov_b32 s57, 0")
    e.label("FB_MAX")
    e(f"ds_read_b128 v[{KR[0]}:{KR[0]+3}], v4")
    e("s_waitcnt lgkmcnt(0)")
    for t in range(2):
        s = S[0][t]
        e(f"v_mfma_f32_32x32x16_bf16 v[{s}:{s+15}], v[{KR[0]}:{KR[0]+3}], v[{Q[t]}:{Q[t]+3}], 0")
    e.nop(16)
    for t in range(2):
        s = S[0][t]
        for i in range(0,16,2): e(f"v_max3_f32 v{M[t]}, v{s+i}, v{s+i+1}, v{M[t]}")
    e("s_add_u32 s57, s57, 1")
    e("s_cmp_eq_u32 s57, 32")
    e("s_movk_i32 s58, 1024")
    e("s_cselect_b32 s58, 33792, s58")
    e("v_add_u32 v4, s58, v4")
    e("s_cmp_lt_u32 s57, 64")
    e("s_cbranch_scc1 FB_MAX")
    for t in range(2):
        e(f"v_mov_b32 v5, v{M[t]}")
        e("s_nop 1")
        e(f"v_permlane32_swap_b32 v{M[t]}, v5")
        e("s_nop 1")
        e(f"v_max_f32 v{M[t]}, v{M[t]}, v5")
        for i in range(16): e(f"v_sub_f32 v{S[1][t]+i}, 0, v{M[t]}")
    for t in range(2):
        for i in range(16): e(f"v_mov_b32 v{O[t]+i}, 0")
    e(f"v_mov_b32 v4, v{VK}")
    e(f"v_mov_b32 v5, v{VV}")
    e("s_mov_b32 s57, 0")
    e.label("FB_MAIN")
    e(f"ds_read_b128 v[{KR[0]}:{KR[0]+3}], v4")
    e("s_mov_b64 exec, s[46:47]")
    e(f"ds_read_b128 v[{VR[0][0]}:{VR[0][0]+3}], v5 offset:32768")
    e(f"ds_read_b128 v[{VR[0][1]}:{VR[0][1]+3}], v5 offset:33280")
    e("s_mov_b64 exec, -1")
    e("s_waitcnt lgkmcnt(0)")
    for t in range(2):
        s = S[0][t]; c = S[1][t]
        e(f"v_mfma_f32_32x32x16_bf16 v[{s}:{s+15}], v[{KR[0]}:{KR[0]+3}], v[{Q[t]}:{Q[t]+3}], v[{c}:{c+15}]")
    e.nop(16)
    for t in range(2):
        for i in range(16): e(f"v_exp_f32 v{S[0][t]+i}, v{S[0][t]+i}")
    e("s_nop 2")
    for t in range(2):
        for hf in range(2):
            s = S[0][t]+8*hf; v = VR[0][hf]; o = O[t]
            e(f"v_smfmac_f32_32x32x32_bf16 v[{o}:{o+15}], v[{v}:{v+3}], v[{s}:{s+7}], v{IDX}")
    e("v_add_u32 v4, 1024, v4")
    e("v_add_u32 v5, 1024, v5")
    e("s_add_u32 s57, s57, 1")
    e("s_cmp_lt_u32 s57, 32")
    e("s_cbranch_scc1 FB_MAIN")
    e.nop(16)

def conv(e):
    e("s_sub_u32 s27, s24, 8")
    e("s_lshr_b32 s28, s27, 1")
    e("s_and_b32 s29, s27, 1")
    e("s_lshl_b32 s30, s25, 6")
    e("s_lshl_b32 s31, s26, 1")
    e("s_add_u32 s30, s30, s31")
    e("s_add_u32 s30, s30, s28")
    e("v_lshlrev_b32 v3, 4, v2")
    e("s_lshl_b32 s46, s25, 2")
    e("s_and_b32 s47, s26, 3")
    e("s_add_u32 s46, s46, s47")
    e("s_lshl_b32 s46, s46, 6")
    e("s_lshl_b32 s47, s28, 5")
    e("s_add_u32 s46, s46, s47")
    e("s_lshl_b32 s46, s46, 10")
    e(f"s_mul_i32 s47, s29, {VF-KF}")
    e("s_add_u32 s46, s46, s47")
    e(f"s_add_u32 s46, s46, {KF}")
    e("s_lshl_b32 s47, s28, 16")
    e("s_lshl_b32 s48, s29, 15")
    e("s_add_u32 s47, s47, s48")
    e("s_waitcnt lgkmcnt(0)")
    srd(e, 12, 8, 9, 0x1000000)
    def kv(t):
        e("s_mov_b32 m0, s47")
        e("s_add_u32 s47, s47, 1024")
        e("buffer_load_dwordx4 v3, s[12:15], s46 offen lds")
        e("s_add_u32 s46, s46, 1024")
    NC0 = TB2 + 2
    for t in range(NC0): kv(t)
    e("s_lshl_b32 s31, s30, 12")
    e(f"s_add_u32 s31, s31, {UT}")
    e("s_lshl_b32 s32, s29, 11")
    e("s_add_u32 s31, s31, s32")
    e("s_mul_i32 s33, s28, 6144")
    e(f"s_add_u32 s33, s33, {UB}")
    e("s_mul_i32 s34, s29, 3072")
    e("s_add_u32 s34, s34, s33")
    e("s_add_u32 m0, s34, 512")
    e("s_add_u32 s35, s31, 1024")
    e("buffer_load_dwordx4 v3, s[12:15], s31 offen lds")
    e("s_add_u32 m0, s34, 2048")
    e("s_nop 0")
    e("buffer_load_dwordx4 v3, s[12:15], s35 offen lds")
    e("s_lshl_b32 s38, s30, 1")
    e("v_mov_b32 v7, s38")
    e("global_load_ushort v13, v7, s[4:5]")
    for t in range(NC0, 32): kv(t)
    nrest = 32 - NC0
    e("v_and_b32 v4, 31, v2")
    e("v_lshrrev_b32 v5, 5, v2")
    e("v_mul_u32_u24 v6, 1536, v5")
    e("v_lshl_add_u32 v6, v4, 4, v6")
    e("v_add_u32 v6, s34, v6")
    for i in range(4): e(f"v_mov_b32 v{8+i}, 0")
    e("ds_write_b128 v6, v[8:11]")
    e(f"s_mul_i32 s35, s30, {KT_CH}")
    e(f"s_add_u32 s35, s35, {KT}")
    e("s_add_u32 s36, s8, s35")
    e("s_addc_u32 s37, s9, 0")
    e("v_lshl_add_u32 v12, v5, 3, v4")
    e("v_and_b32 v7, 1, v4")
    e("v_add_u32 v12, v12, v7")
    e("v_lshlrev_b32 v12, 1, v12")
    e("v_xor_b32 v7, 1, v7")
    e("v_mul_u32_u24 v7, 4224, v7")
    e("v_add_u32 v12, v12, v7")
    stamp(e, 1)
    e(f"s_waitcnt vmcnt({nrest+3})")
    e("s_barrier")
    e("s_waitcnt vmcnt(0) lgkmcnt(0)")
    e("v_lshlrev_b32 v13, 16, v13")
    e("s_barrier")
    stamp(e, 2)
    e("s_setprio 2")
    e("s_cmp_eq_u32 s29, 0")
    e("s_cbranch_scc0 CV_Y")
    conv_role(e, 0)
    e("s_endpgm")
    e.label("CV_Y")
    conv_role(e, 1)

def conv_role(e, role):
    ct = role
    SP = 31 if role == 0 else 47
    NS = 64 if role == 0 else 96
    e(f"v_sub_u32 v7, 3, v5")
    e("v_mul_u32_u24 v14, 1536, v7")
    e("v_lshl_add_u32 v14, v4, 4, v14")
    e("v_add_u32 v14, s33, v14")
    e(f"v_add_u32 v14, {(32+32*ct-SP)*16}, v14")
    e("v_subrev_u32 v15, 3072, v14")
    ACC0, ACC1 = 16, 32
    AR = [48+4*i for i in range(8)]
    A2 = [80+4*i for i in range(6)]
    BR = [104+4*i for i in range(4)]
    PA, PB = 6, 3
    def ldA(s):  return f"global_load_dwordx4 v[{AR[s%8]}:{AR[s%8]+3}], v12, s[36:37] offset:{32*s}"
    def ldA2(s): return f"global_load_dwordx4 v[{A2[s%6]}:{A2[s%6]+3}], v12, s[36:37] offset:{32*(s+64)}"
    def ldB(s):
        sp = s >> 1; r = 14 + (s & 1)
        return f"ds_read_b128 v[{BR[s%4]}:{BR[s%4]+3}], v{r} offset:{(SP-sp)*16}"
    order = []
    def issueA(s):
        if s < NS:
            e(ldA(s)); order.append(('a', s))
        if role == 0 and 32 <= s < 64:
            pass
    def issueA2(s):
        if role == 0 and 32 <= s < 64:
            e(ldA2(s)); order.append(('b', s))
    PA2 = 4
    for s in range(PA): issueA(s)
    for s in range(PB): e(ldB(s))
    for s in range(NS):
        if s + PA < NS: issueA(s + PA)
        issueA2(s + PA2)
        if s + PB < NS: e(ldB(s + PB))
        need = [i for i, x in enumerate(order) if x == ('a', s) or x == ('b', s)]
        n = len(order) - 1 - max(need)
        nb = min(PB, NS - 1 - s)
        e(f"s_waitcnt vmcnt({n}) lgkmcnt({nb})")
        a = AR[s%8]; b = BR[s%4]
        acc = ACC0 if role == 0 else ACC1
        C = "0" if s == 0 else f"v[{acc}:{acc+15}]"
        e(f"v_mfma_f32_32x32x16_bf16 v[{acc}:{acc+15}], v[{a}:{a+3}], v[{b}:{b+3}], {C}")
        if role == 0 and s >= 32:
            a2 = A2[s%6]
            C = "0" if s == 32 else f"v[{ACC1}:{ACC1+15}]"
            e(f"v_mfma_f32_32x32x16_bf16 v[{ACC1}:{ACC1+15}], v[{a2}:{a2+3}], v[{b}:{b+3}], {C}")
    stamp(e, 3)
    e.nop(16)
    e("s_lshl_b32 s40, s28, 12")
    e(f"s_add_u32 s40, s40, {MB}")
    e("v_add_u32 v6, s40, v3")
    e("s_lshl_b32 s41, s28, 2")
    e(f"s_add_u32 s41, s41, {FLG+4}")
    e("v_mov_b32 v7, s41")
    if role == 0:
        for i in range(4): e(f"ds_write_b128 v6, v[{ACC1+4*i}:{ACC1+4*i+3}] offset:{1024*i}")
        e("s_waitcnt lgkmcnt(0)")
        e("v_mov_b32 v8, 1")
        e("ds_write_b32 v7, v8")
        acc = ACC0
    else:
        e("s_mov_b32 s45, 100000")
        e.label("CV_SPIN")
        e("s_sub_u32 s45, s45, 1")
        e("s_cmp_eq_u32 s45, 0")
        e("s_cbranch_scc1 CV_GO")
        e("ds_read_b32 v8, v7")
        e("s_waitcnt lgkmcnt(0)")
        e("v_readfirstlane_b32 s42, v8")
        e("s_nop 3")
        e("s_cmp_lg_u32 s42, 0")
        e("s_cbranch_scc1 CV_GO")
        e("s_sleep 4")
        e("s_branch CV_SPIN")
        e.label("CV_GO")
        for i in range(4): e(f"ds_read_b128 v[{48+4*i}:{48+4*i+3}], v6 offset:{1024*i}")
        e("s_waitcnt lgkmcnt(0)")
        for i in range(16): e(f"v_add_f32 v{ACC1+i}, v{ACC1+i}, v{48+i}")
        acc = ACC1
    e("v_xor_b32 v7, 1, v5")
    e("v_lshlrev_b32 v7, 3, v7")
    e("v_lshl_add_u32 v7, v4, 4, v7")
    e("v_add_u32 v7, s33, v7")
    for g in range(4): e(f"ds_read_b64 v[{64+2*g}:{65+2*g}], v7 offset:{g*1536+(32+32*ct)*16}")
    e("v_lshlrev_b32 v8, 16, v4")
    e("v_lshl_add_u32 v8, v5, 13, v8")
    e("s_lshl_b32 s43, s30, 1")
    e(f"s_add_u32 s43, s43, {1024 + ct*32*32*2048}")
    e("v_add_u32 v8, s43, v8")
    e("s_waitcnt lgkmcnt(0)")
    for g in range(4):
        d0, d1 = 64+2*g, 65+2*g
        t = 80
        e(f"v_and_b32 v{t}, 0xffff0000, v{d1}")
        e(f"v_lshlrev_b32 v{t+1}, 16, v{d1}")
        e(f"v_and_b32 v{t+2}, 0xffff0000, v{d0}")
        e(f"v_lshlrev_b32 v{t+3}, 16, v{d0}")
        for i in range(4): e(f"v_mul_f32 v{t+i}, v{t+i}, v13")
        e(f"v_cvt_pk_bf16_f32 v{t+4}, v{t}, v{t+1}")
        e(f"v_cvt_pk_bf16_f32 v{t+5}, v{t+2}, v{t+3}")
        e(f"v_cvt_pk_bf16_f32 v{t+6}, v{acc+4*g}, v{acc+4*g+1}")
        e(f"v_cvt_pk_bf16_f32 v{t+7}, v{acc+4*g+2}, v{acc+4*g+3}")
        for p in range(2):
            e(f"v_lshlrev_b32 v{t}, 16, v{t+4+p}")
            e(f"v_and_b32 v{t+1}, 0xffff0000, v{t+4+p}")
            e(f"v_lshlrev_b32 v{t+2}, 16, v{t+6+p}")
            e(f"v_and_b32 v{t+3}, 0xffff0000, v{t+6+p}")
            e(f"v_add_f32 v{t}, v{t}, v{t+2}")
            e(f"v_add_f32 v{t+1}, v{t+1}, v{t+3}")
            o = 90 + 2*g + p
            e(f"v_cvt_pk_bf16_f32 v{o}, v{t}, v{t+1}")
            rowoff = (8*g + 2*p) * 2048
            e(f"v_add_u32 v{100+2*p}, {rowoff}, v8")
            e(f"v_add_u32 v{101+2*p}, {rowoff+2048}, v8")
            e(f"global_store_short v{100+2*p}, v{o}, s[6:7]")
            e(f"global_store_short_d16_hi v{101+2*p}, v{o}, s[6:7]")
    stamp(e, 4)
    if PROF["on"]: e("s_waitcnt vmcnt(0)")
    stamp(e, 5)
    stamp_flush(e, 1, 6)

def gen_k3():
    e = E()
    e("s_cmp_ge_u32 s2, 256")
    e("s_cbranch_scc1 K3_END")
    stamp(e, 0)
    e("s_load_dwordx2 s[4:5], s[0:1], 16")
    e("s_load_dwordx2 s[6:7], s[0:1], 80")
    e("s_load_dwordx2 s[8:9], s[0:1], 96")
    e("v_lshrrev_b32 v1, 6, v0")
    e("v_and_b32 v2, 63, v0")
    e("v_readfirstlane_b32 s23, v1")
    e("s_and_b32 s25, s2, 7")
    e("s_lshr_b32 s26, s2, 3")
    e("s_lshl_b32 s27, s25, 2")
    e("s_and_b32 s28, s26, 3")
    e("s_add_u32 s27, s27, s28")
    e("s_lshr_b32 s28, s26, 2")
    e("v_lshlrev_b32 v3, 4, v2")
    e("s_and_b32 s24, s23, 3")
    e("s_lshr_b32 s30, s24, 1")
    e("s_cmp_lt_u32 s23, 4")
    e("s_cbranch_scc1 K3_COMPUTE")
    e("v_lshrrev_b32 v4, 3, v2")
    e("v_and_b32 v5, 7, v2")
    e("v_bfe_u32 v6, v2, 4, 1")
    e("v_lshlrev_b32 v6, 2, v6")
    e("v_xor_b32 v5, v5, v6")
    e("v_lshlrev_b32 v4, 10, v4")
    e("v_lshl_add_u32 v4, v5, 4, v4")
    e("s_and_b32 s31, s24, 1")
    e("s_lshl_b32 s31, s31, 2")
    e("s_lshl_b32 s32, s27, 1")
    e("s_add_u32 s32, s32, s30")
    e("s_lshl_b32 s32, s32, 5")
    e("s_add_u32 s32, s32, s31")
    e("s_lshl_b32 s32, s32, 10")
    e(f"s_add_u32 s32, s32, {OW}")
    e("s_lshl_b32 s33, s30, 15")
    e("s_lshl_b32 s34, s31, 10")
    e("s_add_u32 s33, s33, s34")
    e("s_lshl_b32 s34, s24, 15")
    e("s_lshl_b32 s35, s24, 12")
    e("s_waitcnt lgkmcnt(0)")
    srd(e, 12, 8, 9, 0x800000)
    e("s_lshl_b32 s29, s28, 7")
    e("s_add_u32 s4, s4, s29")
    e("s_addc_u32 s5, s5, 0")
    e("s_mov_b32 s16, s4")
    e("s_and_b32 s17, s5, 0xffff")
    e("s_sub_u32 s18, 524288, s29")
    e("s_mov_b32 s19, 0x20000")
    stamp(e, 1)
    for c in range(4):
        for i in range(4):
            e(f"s_add_u32 m0, s35, {65536 + (128*c+8*i)*128}")
            e(f"s_add_u32 s36, s34, {(128*c+8*i)*1024}")
            e("buffer_load_dwordx4 v4, s[16:19], s36 offen lds")
        for i in range(4):
            e(f"s_add_u32 m0, s33, {(8*c+i)*1024}")
            e(f"s_add_u32 s36, s32, {(8*c+i)*1024}")
            e("buffer_load_dwordx4 v3, s[12:15], s36 offen lds")
        if c >= 1:
            e("s_waitcnt vmcnt(8)")
            e("s_barrier")
    e("s_waitcnt vmcnt(0)")
    e("s_barrier")
    stamp(e, 2)
    stamp_flush(e, 2, 3, "s23")
    e("s_endpgm")
    e.label("K3_COMPUTE")
    e("s_lshl_b32 s36, s30, 15")
    e("v_add_u32 v6, s36, v3")
    e("v_lshrrev_b32 v7, 5, v2")
    e("v_bfe_u32 v8, v2, 2, 2")
    e("v_lshl_add_u32 v7, v7, 2, v8")
    e("v_bfe_u32 v8, v2, 4, 1")
    e("v_lshlrev_b32 v8, 1, v8")
    e("v_bfe_u32 v9, v2, 1, 1")
    e("v_add_u32 v8, v8, v9")
    e("s_and_b32 s37, s24, 1")
    e("s_lshl_b32 s37, s37, 2")
    e("v_add_u32 v8, s37, v8")
    e("v_bfe_u32 v9, v7, 1, 1")
    e("v_lshlrev_b32 v9, 2, v9")
    e("v_xor_b32 v8, v8, v9")
    e("v_lshlrev_b32 v7, 7, v7")
    e("v_lshl_add_u32 v7, v8, 4, v7")
    e("v_and_b32 v9, 1, v2")
    e("v_lshl_add_u32 v7, v9, 3, v7")
    e("v_add_u32 v7, 0x10000, v7")
    e("v_and_b32 v10, 31, v2")
    e("v_lshlrev_b32 v10, 11, v10")
    e("v_lshrrev_b32 v9, 5, v2")
    e("v_lshl_add_u32 v10, v9, 3, v10")
    e("s_lshl_b32 s36, s27, 6")
    e("s_lshl_b32 s37, s30, 5")
    e("s_add_u32 s36, s36, s37")
    e("s_lshl_b32 s36, s36, 11")
    e("s_lshl_b32 s37, s28, 7")
    e("s_add_u32 s36, s36, s37")
    e("s_and_b32 s37, s24, 1")
    e("s_lshl_b32 s37, s37, 6")
    e("s_add_u32 s36, s36, s37")
    e("v_add_u32 v10, s36, v10")
    ACC = 16
    def rd(hd):
        b = 32 + 8*(hd % 4)
        e(f"ds_read_b128 v[{b}:{b+3}], v6 offset:{hd*1024}")
        e(f"ds_read_b64_tr_b16 v[{b+4}:{b+5}], v7 offset:{hd*2048}")
        e(f"ds_read_b64_tr_b16 v[{b+6}:{b+7}], v7 offset:{hd*2048+1024}")
    stamp(e, 1)
    for c in range(4):
        e("s_barrier")
        if c == 0: stamp(e, 2)
        if c == 3: stamp(e, 3)
        rd(8*c); rd(8*c+1)
        for i in range(8):
            hd = 8*c+i
            if i + 2 < 8:
                rd(hd+2); e("s_waitcnt lgkmcnt(6)")
            elif i + 1 < 8: e("s_waitcnt lgkmcnt(3)")
            else: e("s_waitcnt lgkmcnt(0)")
            b = 32 + 8*(hd % 4)
            C = "0" if hd == 0 else f"v[{ACC}:{ACC+15}]"
            e(f"v_mfma_f32_32x32x16_bf16 v[{ACC}:{ACC+15}], v[{b+4}:{b+7}], v[{b}:{b+3}], {C}")
    e.nop(16)
    for i in range(8): e(f"v_cvt_pk_bf16_f32 v{ACC+i}, v{ACC+2*i}, v{ACC+2*i+1}")
    e("s_waitcnt lgkmcnt(0)")
    for g in range(4): e(f"global_store_dwordx2 v10, v[{ACC+2*g}:{ACC+2*g+1}], s[6:7] offset:{16*g}")
    stamp(e, 4)
    if PROF["on"]: e("s_waitcnt vmcnt(0)")
    stamp(e, 5)
    stamp_flush(e, 2, 6, "s23")
    e.label("K3_END")
    e("s_endpgm")
    return e.text()
```

```python
import sys
from asmlib import *
import gen_k1, gen_k23
HEADER = open("concat_heads__mha_block__ssm_conv_s4d__prompt.s.ref").read().split("; Override launch")[0]
def build(with_conv=True):
    s = HEADER
    s += "; @launch kernel=k1_kernel grid=(512,1,1) block=(320,1,1) lds=81920\n"
    s += f"; @launch kernel=k2_kernel grid=(256,1,1) block=(768,1,1) lds={gen_k23.K2_LDS}\n"
    s += "; @launch kernel=k3_kernel grid=(256,1,1) block=(512,1,1) lds=131072\n"
    s += '.amdgcn_target "amdgcn-amd-amdhsa--gfx950"\n.text\n'
    s += khead("k1_kernel") + gen_k1.gen_k1()
    s += khead("k2_kernel") + gen_k23.gen_k2(with_conv)
    s += khead("k3_kernel") + gen_k23.gen_k3()
    s += '.section .rodata,"a"\n'
    s += kdesc("k1_kernel", 128, 96) + kdesc("k2_kernel", 168, 96) + kdesc("k3_kernel", 64, 96)
    return s
if __name__ == "__main__":
    out = sys.argv[1] if len(sys.argv) > 1 else "concat_heads__mha_block__ssm_conv_s4d__prompt.s"
    if len(sys.argv) > 2 and sys.argv[2] == "prof":
        PROF["on"] = True
    open(out, "w").write(build())
    print("written", out)
```

```python
class E:
    def __init__(self):
        self.L = []
        self.uid = 0
    def __call__(self, s=""):
        for line in s.split("\n"):
            line = line.strip()
            if not line: continue
            if line.endswith(":"):
                self.L.append(line)
            else:
                self.L.append("    " + line)
    def label(self, n): self.L.append(n + ":")
    def c(self, s): self.L.append("    ; " + s)
    def nop(self, n):
        while n > 0:
            k = min(n, 16)
            self.L.append(f"    s_nop {k-1}")
            n -= k
    def text(self): return "\n".join(self.L) + "\n"
    def newlabel(self, p="L"):
        self.uid += 1
        return f"{p}_{self.uid}"

def vr(base, n=1):
    return f"v{base}" if n == 1 else f"v[{base}:{base+n-1}]"
def sr(base, n=1):
    return f"s{base}" if n == 1 else f"s[{base}:{base+n-1}]"

def kdesc(name, vgpr, sgpr=96, acc=None):
    if acc is None: acc = (vgpr + 3)//4*4
    return f""".p2align 6
.amdhsa_kernel {name}
  .amdhsa_next_free_vgpr {vgpr}
  .amdhsa_next_free_sgpr {sgpr}
  .amdhsa_accum_offset {acc}
  .amdhsa_group_segment_fixed_size 0
  .amdhsa_kernarg_size 104
  .amdhsa_user_sgpr_count 2
  .amdhsa_user_sgpr_kernarg_segment_ptr 1
  .amdhsa_system_sgpr_workgroup_id_x 1
.end_amdhsa_kernel
"""
def khead(name):
    return f""".globl {name}
.p2align 8
.type {name},@function
{name}:
"""

PROF = {"on": False}
PROF_OFF = 0x2000000
def stamp(e, k):
    if not PROF["on"]: return
    e(f"s_memtime s[{70+2*k}:{71+2*k}]")
    if k == 0: e("s_memrealtime s[96:97]")
def stamp_flush(e, kernel_idx, nst, wave_sgpr="s24"):
    if not PROF["on"]: return
    e("s_memrealtime s[94:95]")
    e("s_load_dwordx2 s[68:69], s[0:1], 96")
    e("s_waitcnt lgkmcnt(0)")
    e("s_lshl_b32 s66, s2, 4")
    e(f"s_add_u32 s66, s66, {wave_sgpr}")
    e("s_lshl_b32 s66, s66, 6")
    e(f"s_add_u32 s66, s66, {PROF_OFF + kernel_idx*0x100000}")
    e("s_add_u32 s68, s68, s66")
    e("s_addc_u32 s69, s69, 0")
    e("v_mov_b32 v60, 0")
    for k in range(nst):
        e(f"v_mov_b32 v61, s{70+2*k}")
        e(f"global_store_dword v60, v61, s[68:69] offset:{4*k}")
    e("v_mov_b32 v61, s94")
    e(f"global_store_dword v60, v61, s[68:69] offset:60")
    e("v_mov_b32 v61, s96")
    e(f"global_store_dword v60, v61, s[68:69] offset:56")
    e("s_memtime s[94:95]")
    e("s_waitcnt lgkmcnt(0)")
    e("v_mov_b32 v61, s94")
    e(f"global_store_dword v60, v61, s[68:69] offset:52")
    e("s_waitcnt vmcnt(0)")
```

```python
from asmlib import *
QF=0; KF=0x200000; VF=0x400000; OW=0x600000; UT=0x800000; KT=0xA00000; YT=0xF00000; FL=0x1200000
KT_CH = 8448
FE1 = FL; FE2 = FL + 4096; FE3 = FL + 5120; FE4 = FL + 8192
NST=16; WR=8; XR=6; WSLOT=12288; XSLOT=8192; WBASE=XR*XSLOT
PITCH=528; KST=4352
UB=131072; STG=143360; QB=152064; EXB=143360; FLG=161792
LDS_SIZE = 163840
F_FALL, F_S1, F_S2, F_F1, F_ST, F_CV, F_F2, F_NON, F_U0, F_U1, F_M0, F_M1 = (FLG+4*i for i in range(12))
TB2 = 3
OPT = {}

def srd(e, d, lo, hi, size):
    e(f"s_mov_b32 s{d}, s{lo}")
    e(f"s_and_b32 s{d+1}, s{hi}, 0xffff")
    e(f"s_mov_b32 s{d+2}, {size}")
    e(f"s_mov_b32 s{d+3}, 0x20000")

def lds_inc(e, addr, vt):
    e("s_waitcnt lgkmcnt(0)")
    e(f"v_mov_b32 v{vt}, {addr}")
    e(f"v_mov_b32 v{vt+1}, 1")
    e("s_mov_b64 exec, 1")
    e(f"ds_add_u32 v{vt}, v{vt+1}")
    e("s_mov_b64 exec, -1")
def lds_wait(e, addr, target, vt, st, tag):
    e(f"v_mov_b32 v{vt}, {addr}")
    e(f"s_mov_b32 s{st+1}, 0x400000")
    e.label(f"LW_{tag}")
    e(f"ds_read_b32 v{vt+1}, v{vt}")
    e(f"s_sub_u32 s{st+1}, s{st+1}, 1")
    e("s_waitcnt lgkmcnt(0)")
    e(f"v_readfirstlane_b32 s{st}, v{vt+1}")
    e(f"s_cmp_eq_u32 s{st+1}, 0")
    e(f"s_cbranch_scc1 LWD_{tag}")
    e(f"s_cmp_ge_u32 s{st}, {target}")
    e(f"s_cbranch_scc1 LWD_{tag}")
    e("s_sleep 1")
    e(f"s_branch LW_{tag}")
    e.label(f"LWD_{tag}")
def gpoll(e, base_sgpr_expr, nl, vt, st, tag):
    e(f"v_and_b32 v{vt}, {nl-1}, v2")
    e(f"v_lshlrev_b32 v{vt}, 2, v{vt}")
    e(f"v_add_u32 v{vt}, s{st}, v{vt}")
    e(f"s_mov_b32 s{st+1}, 0x100000")
    e.label(f"GP_{tag}")
    e(f"global_load_dword v{vt+1}, v{vt}, s[62:63] sc1")
    e(f"s_sub_u32 s{st+1}, s{st+1}, 1")
    e("s_waitcnt vmcnt(0)")
    e(f"v_cmp_eq_u32 vcc, s60, v{vt+1}")
    e(f"s_cmp_eq_u32 s{st+1}, 0")
    e(f"s_cbranch_scc1 GPD_{tag}")
    e("s_cmp_eq_u64 vcc, exec")
    e(f"s_cbranch_scc0 GP_{tag}")
    e.label(f"GPD_{tag}")
def pub1(e, st, vt):
    e(f"v_mov_b32 v{vt}, s{st}")
    e(f"v_mov_b32 v{vt+1}, s60")
    e("s_mov_b64 exec, 1")
    e(f"global_store_dword v{vt}, v{vt+1}, s[62:63] sc1")
    e("s_mov_b64 exec, -1")
def lds_set(e, addr, vt):
    e(f"v_mov_b32 v{vt}, {addr}")
    e(f"v_mov_b32 v{vt+1}, 1")
    e("s_mov_b64 exec, 1")
    e(f"ds_write_b32 v{vt}, v{vt+1}")
    e("s_mov_b64 exec, -1")
def get_nonce(e, vt):
    e(f"v_mov_b32 v{vt}, {F_NON}")
    e(f"ds_read_b32 v{vt+1}, v{vt}")
    e("s_waitcnt lgkmcnt(0)")
    e(f"v_readfirstlane_b32 s60, v{vt+1}")
    e("s_nop 3")

def tile_ids(e):
    e("s_lshr_b32 s27, s25, 1")
    e("s_lshl_b32 s27, s27, 3")
    e("s_and_b32 s28, s26, 7")
    e("s_add_u32 s27, s27, s28")
    e("s_and_b32 s28, s25, 1")
    e("s_lshl_b32 s28, s28, 2")
    e("s_lshr_b32 s29, s26, 3")
    e("s_add_u32 s28, s28, s29")

def p1_loader(e):
    e("s_load_dwordx4 s[4:7], s[0:1], 0")
    tile_ids(e)
    e("s_sub_u32 s30, s24, 8")
    e("v_lshrrev_b32 v3, 3, v2")
    e("v_lshlrev_b32 v3, 10, v3")
    e("v_lshrrev_b32 v4, 4, v2")
    e("v_and_b32 v5, 7, v2")
    e("v_xor_b32 v6, v5, v4")
    e("v_xor_b32 v7, 4, v6")
    e("v_lshl_add_u32 v8, v6, 4, v3")
    e("v_lshl_add_u32 v9, v7, 4, v3")
    e("s_lshl_b32 s31, s30, 14")
    e("s_lshl_b32 s34, s30, 11")
    e("s_mul_i32 s35, s30, 192")
    for ii in range(3):
        e(f"v_add_u32 v13, s35, v2")
        if ii: e(f"v_add_u32 v13, {64*ii}, v13")
        e("v_mul_u32_u24 v14, 683, v13")
        e("v_lshrrev_b32 v14, 14, v14")
        e("v_mul_u32_u24 v15, 24, v14")
        e("v_sub_u32 v15, v13, v15")
        e("v_lshrrev_b32 v16, 3, v15")
        e("v_and_b32 v15, 7, v15")
        e("v_bfe_u32 v17, v14, 1, 1")
        e("v_lshlrev_b32 v17, 2, v17")
        e("v_xor_b32 v15, v15, v17")
        e("v_mul_u32_u24 v14, 3072, v14")
        e("v_lshl_add_u32 v14, v16, 10, v14")
        e(f"v_lshl_add_u32 v{10+ii}, v15, 4, v14")
    e("s_mul_i32 s35, s30, 3072")
    e(f"s_add_u32 s35, s35, {WBASE}")
    e("s_lshl_b32 s29, s27, 16")
    e("s_lshl_b32 s33, s28, 7")
    e("s_waitcnt lgkmcnt(0)")
    e("s_add_u32 s4, s4, s29")
    e("s_addc_u32 s5, s5, 0")
    srd(e, 12, 4, 5, 65536)
    e("s_add_u32 s6, s6, s33")
    e("s_addc_u32 s7, s7, 0")
    e("s_mov_b32 s16, s6")
    e("s_and_b32 s17, s7, 0xffff")
    e("s_sub_u32 s18, 1572864, s33")
    e("s_mov_b32 s19, 0x20000")
    stamp(e, 1)
    order = []
    def dmaX(xs):
        for ii in range(2):
            e(f"s_add_u32 m0, s34, {(xs % XR)*XSLOT + ii*1024}")
            e(f"s_add_u32 s32, s31, {xs*128 + ii*8192}")
            e(f"buffer_load_dwordx4 v{8+ii}, s[12:15], s32 offen lds")
            order.append(('x', xs))
    def dmaW(st):
        e(f"s_mov_b32 s33, {st*98304}")
        for ii in range(3):
            e(f"s_add_u32 m0, s35, {(st % WR)*WSLOT + ii*1024}")
            e("s_nop 0")
            e(f"buffer_load_dwordx4 v{10+ii}, s[16:19], s33 offen lds")
            order.append(('w', st))
    nx = [0]; nw = [0]
    def issue_upto(wmax, xmax):
        wm = min(wmax, NST-1); xm = min(xmax, NST//2-1)
        while nw[0] <= wm or nx[0] <= xm:
            if nx[0] <= xm and (2*nx[0] <= nw[0] or nw[0] > wm):
                dmaX(nx[0]); nx[0] += 1
            else:
                dmaW(nw[0]); nw[0] += 1
    PRE = OPT.get('pre', 3)
    issue_upto(PRE-1, (PRE-1)//2)
    for k in range(NST):
        need = [i for i, o in enumerate(order) if o == ('w', k) or o == ('x', k//2)]
        n = len(order) - 1 - max(need)
        e(f"s_waitcnt vmcnt({n})")
        e("s_barrier")
        xfree = (k-2)//2 if k % 2 == 0 else (k-3)//2
        wlim = min(k - 1 + WR, nw[0] + OPT.get('ramp', 2) - 1)
        issue_upto(wlim, min(xfree + XR, (wlim+1)//2))
    e("s_barrier")

def params_load(e):
    e("s_load_dwordx4 s[4:7], s[0:1], 32")
    e("s_load_dwordx4 s[8:11], s[0:1], 48")
    e("s_load_dwordx2 s[12:13], s[0:1], 64")
    e("s_lshl_b32 s28, s25, 6")
    e("s_lshl_b32 s29, s26, 1")
    e("s_add_u32 s28, s28, s29")
    e("s_bfe_u32 s30, s24, 0x10001")
    e("s_and_b32 s31, s24, 1")
    e("s_add_u32 s32, s28, s30")
    e("s_lshl_b32 s33, s32, 7")
    e("s_lshl_b32 s34, s31, 6")
    e("s_add_u32 s33, s33, s34")
    e("v_add_u32 v3, s33, v2")
    e("v_lshlrev_b32 v3, 1, v3")
    e("s_lshl_b32 s33, s32, 1")
    e("v_mov_b32 v4, s33")
    e("s_waitcnt lgkmcnt(0)")
    e("global_load_ushort v160, v3, s[4:5]")
    e("global_load_ushort v161, v3, s[6:7]")
    e("global_load_ushort v162, v3, s[8:9]")
    e("global_load_ushort v163, v3, s[10:11]")
    e("global_load_ushort v164, v4, s[12:13]")

def p1_compute(e):
    e("s_load_dwordx2 s[50:51], s[0:1], 88")
    tile_ids(e)
    e("s_and_b32 s40, s24, 1")
    e("s_lshr_b32 s41, s24, 1")
    e("v_and_b32 v9, 31, v2")
    e("v_lshrrev_b32 v10, 5, v2")
    e("v_bfe_u32 v11, v9, 1, 3")
    e("v_xor_b32 v11, v11, v10")
    e("v_lshlrev_b32 v6, 7, v9")
    e("s_lshl_b32 s29, s40, 12")
    e("v_add_u32 v6, s29, v6")
    e("v_lshl_add_u32 v6, v11, 4, v6")
    e("v_xor_b32 v7, 32, v6")
    e("v_xor_b32 v15, 64, v6")
    e("v_xor_b32 v3, 96, v6")
    XA = [6, 7, 15, 3]
    e("v_bfe_u32 v11, v2, 2, 2")
    e("v_lshl_add_u32 v13, v10, 3, v11")
    e("v_mul_u32_u24 v8, 384, v13")
    e("v_bfe_u32 v11, v2, 3, 1")
    e("v_xor_b32 v11, s41, v11")
    e("v_lshl_add_u32 v8, v11, 6, v8")
    e("v_bfe_u32 v11, v2, 4, 1")
    e("v_lshl_add_u32 v8, v11, 5, v8")
    e("v_and_b32 v11, 3, v2")
    e("v_lshl_add_u32 v8, v11, 3, v8")
    e(f"v_add_u32 v8, {WBASE}, v8")
    e(f"v_add_u32 v4, {4*WSLOT}, v8")
    e("v_lshlrev_b32 v12, 4, v2")
    e("v_and_b32 v11, 19, v9")
    e("v_and_b32 v13, 4, v9")
    e("v_lshl_or_b32 v11, v13, 1, v11")
    e("v_and_b32 v13, 8, v9")
    e("v_lshrrev_b32 v13, 1, v13")
    e("v_or_b32 v11, v11, v13")
    e("v_lshl_add_u32 v11, v10, 5, v11")
    e("v_lshlrev_b32 v13, 4, v11")
    e("v_lshrrev_b32 v11, 4, v9")
    e("v_lshlrev_b32 v14, 16, v11")
    e("v_lshl_add_u32 v14, v10, 8, v14")
    e("v_and_b32 v11, 15, v9")
    e("v_lshl_add_u32 v14, v11, 4, v14")
    srd(e, 20, 62, 63, 0x600000)
    e("v_mov_b32 v5, 0")
    FR = [16, 48]; ACC = [80, 96, 112]
    def frag_reads(st):
        b = FR[st & 1]; L = []
        slot = st % WR
        va, so = (8, slot) if slot < 4 else (4, slot-4)
        for ks in range(2):
            L.append(f"ds_read_b128 v[{b+4*ks}:{b+4*ks+3}], v{XA[2*(st&1)+ks]} offset:{((st//2) % XR)*XSLOT}")
            for nt in range(3):
                r = b + 8 + (ks*3+nt)*4
                off = so*WSLOT + ks*16*384 + nt*128
                L.append(f"ds_read_b64_tr_b16 v[{r}:{r+1}], v{va} offset:{off}")
                L.append(f"ds_read_b64_tr_b16 v[{r+2}:{r+3}], v{va} offset:{off+4*384}")
        return L
    def mfmas(st):
        b = FR[st & 1]; L = []
        for ks in range(2):
            X = f"v[{b+4*ks}:{b+4*ks+3}]"
            for nt in range(3):
                r = b + 8 + (ks*3+nt)*4
                W = f"v[{r}:{r+3}]"
                a = ACC[nt]; A = f"v[{a}:{a+15}]"
                C = "0" if (st == 0 and ks == 0) else A
                if nt < 2: L.append(f"v_mfma_f32_32x32x16_bf16 {A}, {W}, {X}, {C}")
                else:      L.append(f"v_mfma_f32_32x32x16_bf16 {A}, {X}, {W}, {C}")
        return L
    stamp(e, 1)
    e("s_barrier")
    stamp(e, 2)
    for l in frag_reads(0): e(l)
    for st in range(NST):
        e(f"s_waitcnt lgkmcnt(0)")
        e("s_barrier")
        if st == 8:
            e("global_load_dword v159, v5, s[50:51] sc1")
        if st + 1 < NST:
            R = frag_reads(st + 1); M = mfmas(st)
            ri = 0
            for mi, m in enumerate(M):
                e(m)
                k = 3 if mi < 4 else 1
                for _ in range(k):
                    if ri < len(R): e(R[ri]); ri += 1
            while ri < len(R): e(R[ri]); ri += 1
        else:
            for m in mfmas(st): e(m)
    stamp(e, 3)
    e.nop(14)
    e("s_mov_b32 s33, 0x3eb8aa3b")
    e("s_lshl_b32 s36, s28, 2")
    e("s_lshl_b32 s37, s41, 1")
    e("s_add_u32 s36, s36, s37")
    e("s_lshl_b32 s36, s36, 6")
    e("s_lshl_b32 s37, s27, 1")
    e("s_add_u32 s36, s36, s37")
    e("s_add_u32 s36, s36, s40")
    e("s_lshl_b32 s36, s36, 10")
    P = 16
    for nt in (1, 2, 0):
        a = ACC[nt]
        if nt == 0:
            for i in range(16): e(f"v_mul_f32 v{a+i}, s33, v{a+i}")
        for i in range(8): e(f"v_cvt_pk_bf16_f32 v{P+8*nt+i}, v{a+2*i}, v{a+2*i+1}")
        base = (QF, KF, VF)[nt]; second = (65536, 65536, 512)[nt]; va = (12, 13, 14)[nt]
        e(f"s_add_u32 s37, s36, {base}")
        e(f"buffer_store_dwordx4 v[{P+8*nt}:{P+8*nt+3}], v{va}, s[20:23], s37 offen sc1")
        e(f"s_add_u32 s38, s36, {base+second}")
        e(f"buffer_store_dwordx4 v[{P+8*nt+4}:{P+8*nt+7}], v{va}, s[20:23], s38 offen sc1")
    e("s_waitcnt vmcnt(6)")
    e("s_mov_b32 s39, 0x100000")
    e.label("P1C_NON")
    e("v_readfirstlane_b32 s60, v159")
    e("s_sub_u32 s39, s39, 1")
    e("s_cmp_lg_u32 s60, 0")
    e("s_cbranch_scc1 P1C_NOND")
    e("s_cmp_eq_u32 s39, 0")
    e("s_cbranch_scc1 P1C_NOND")
    e("global_load_dword v159, v5, s[50:51] sc1")
    e("s_waitcnt vmcnt(0)")
    e("s_branch P1C_NON")
    e.label("P1C_NOND")
    e("s_lshl_b32 s36, s28, 1")
    e("s_add_u32 s36, s36, s41")
    e("s_lshl_b32 s36, s36, 6")
    e("s_lshl_b32 s37, s27, 1")
    e("s_add_u32 s36, s36, s37")
    e("s_add_u32 s36, s36, s40")
    e("s_lshl_b32 s36, s36, 2")
    e(f"s_add_u32 s61, s36, {FE1}")
    e("s_cmp_lg_u32 s24, 0")
    e("s_cbranch_scc1 P1C_NONON")
    e(f"v_mov_b32 v6, {F_NON}")
    e("v_mov_b32 v7, s60")
    e("ds_write_b32 v6, v7")
    e.label("P1C_NONON")

UTB = 131072
def ut_task(e):
    e("s_load_dwordx2 s[42:43], s[0:1], 24")
    e("s_and_b32 s36, s26, 3")
    e("s_lshr_b32 s37, s26, 2")
    e("v_and_b32 v5, 7, v2")
    e("v_lshrrev_b32 v6, 3, v2")
    e("s_lshl_b32 s38, s37, 8")
    e("s_lshl_b32 s39, s36, 3")
    e("s_add_u32 s38, s38, s39")
    e("v_lshlrev_b32 v7, 5, v6")
    e("v_add_u32 v7, s38, v7")
    e("v_lshlrev_b32 v7, 10, v7")
    e("s_lshl_b32 s38, s25, 7")
    e("v_lshl_add_u32 v7, v5, 4, v7")
    e("v_add_u32 v7, s38, v7")
    e("v_add_u32 v8, 0x1000, v7")
    e("s_lshl_b32 s38, s25, 18")
    e("s_lshl_b32 s39, s36, 10")
    e("s_add_u32 s38, s38, s39")
    e("s_lshl_b32 s39, s37, 7")
    e("s_add_u32 s38, s38, s39")
    e(f"s_add_u32 s38, s38, {UT}")
    e("v_lshlrev_b32 v56, 15, v6")
    e("v_lshl_add_u32 v56, v5, 4, v56")
    e("v_add_u32 v56, s38, v56")
    e("v_lshlrev_b32 v57, 7, v5")
    e("v_lshl_add_u32 v57, v6, 4, v57")
    e(f"v_add_u32 v57, {UTB}, v57")
    e("v_lshlrev_b32 v58, 4, v2")
    e(f"v_add_u32 v58, {UTB}, v58")
    e("s_waitcnt lgkmcnt(0)")
    for t in range(8):
        if t < 4: e(f"global_load_dwordx4 v[{96+4*t}:{99+4*t}], v7, s[42:43] offset:{1024*t}")
        else:     e(f"global_load_dwordx4 v[{96+4*t}:{99+4*t}], v8, s[42:43] offset:{1024*(t-4)}")
    e("s_mov_b32 s40, 0x05040100")
    e("s_mov_b32 s41, 0x07060302")

def ut_finish_a(e):
    e("s_waitcnt vmcnt(0)")
    for k in range(8):
        sel = "s40" if k % 2 == 0 else "s41"
        o = 64 + 4*(k % 4)
        for j in range(4):
            lo = 96 + 4*(7-2*j) + (k >> 1)
            hi = 96 + 4*(6-2*j) + (k >> 1)
            e(f"v_perm_b32 v{o+j}, v{hi}, v{lo}, {sel}")
        e(f"ds_write_b128 v57, v[{o}:{o+3}] offset:{1024*k}")
def ut_finish_b(e):
    e("s_waitcnt lgkmcnt(0)")
    for k in range(8): e(f"ds_read_b128 v[{96+4*k}:{99+4*k}], v58 offset:{1024*k}")
    for k in range(8):
        e(f"s_waitcnt lgkmcnt({7-k})")
        e(f"global_store_dwordx4 v56, v[{96+4*k}:{99+4*k}], s[62:63] sc1")
        if k < 7: e("v_add_u32 v56, 0x1000, v56")

def kgen8(e):
    e("s_lshl_b32 s28, s25, 6")
    e("s_lshl_b32 s29, s26, 1")
    e("s_add_u32 s28, s28, s29")
    e("s_bfe_u32 s30, s24, 0x10001")
    e("s_and_b32 s31, s24, 1")
    e("s_lshr_b32 s35, s24, 2")
    e("s_add_u32 s32, s28, s30")
    LOG2E="0x3fb8aa3b"; INV2PI="0x3e22f983"
    e("s_cmp_lt_u32 s24, 4")
    e("s_cbranch_scc1 KG_PW")
    e("s_waitcnt vmcnt(0)")
    e("s_branch KG_PD")
    e.label("KG_PW")
    e("s_waitcnt vmcnt(7)")
    e.label("KG_PD")
    e("v_lshlrev_b32 v10, 16, v160")
    e("v_lshlrev_b32 v11, 16, v161")
    e("v_lshlrev_b32 v12, 16, v162")
    e("v_lshlrev_b32 v13, 16, v163")
    e("v_lshlrev_b32 v14, 16, v164")
    e(f"v_mul_f32 v14, {LOG2E}, v14")
    e(f"v_mul_f32 v10, {LOG2E}, v10")
    e("v_exp_f32 v14, v14")
    e("v_exp_f32 v10, v10")
    e("s_nop 0")
    e("v_cvt_pk_bf16_f32 v14, v14, v14")
    e("v_cvt_pk_bf16_f32 v10, v10, v10")
    e("v_lshlrev_b32 v14, 16, v14")
    e("v_lshlrev_b32 v10, 16, v10")
    e("v_mul_f32 v10, v10, v14")
    e("v_mul_f32 v11, v11, v14")
    e(f"v_mul_f32 v10, 0xbfb8aa3b, v10")
    e(f"v_mul_f32 v11, {INV2PI}, v11")
    e("s_lshl_b32 s36, s30, 16")
    e("s_add_u32 s36, s36, 5120")
    e("s_add_u32 s37, s36, 32768")
    e("s_lshl_b32 s38, s31, 8")
    e("v_lshlrev_b32 v15, 2, v2")
    e("v_add_u32 v15, s38, v15")
    def cexp(d, mult, t0, t1):
        if mult is None:
            e(f"v_exp_f32 v{t0}, v10"); e(f"v_fract_f32 v{t1}, v11")
        else:
            e(f"v_mul_f32 v{t0}, {mult}, v10"); e(f"v_mul_f32 v{t1}, {mult}, v11")
            e(f"v_exp_f32 v{t0}, v{t0}"); e(f"v_fract_f32 v{t1}, v{t1}")
        e("s_nop 0")
        e(f"v_cos_f32 v{d}, v{t1}"); e(f"v_sin_f32 v{d+1}, v{t1}")
        e("s_nop 0")
        e(f"v_mul_f32 v{d}, v{d}, v{t0}"); e(f"v_mul_f32 v{d+1}, v{d+1}, v{t0}")
    def cm1(d,z,w): e(f"v_pk_mul_f32 v[{d}:{d+1}], v[{z}:{z+1}], v[{w}:{w+1}] op_sel:[0,0] op_sel_hi:[0,1]")
    def cm2(d,z,w): e(f"v_pk_fma_f32 v[{d}:{d+1}], v[{z}:{z+1}], v[{w}:{w+1}], v[{d}:{d+1}] op_sel:[1,1,0] op_sel_hi:[1,0,1] neg_lo:[1,0,0]")
    def tmp(row): return 60 + (row % 8)
    def wr(row, z, neg):
        e(f"v_cvt_pk_bf16_f32 v{tmp(row)}, v{z}, {'-' if neg else ''}v{z+1}")
        e(f"ds_write_b32 v15, v{tmp(row)} offset:{row*PITCH}")
    def chains(cur, step, nrows, neg, saved):
        alt = [c+16 for c in cur]
        pend = [(r, cur[r]) for r in range(4)]
        row = 4
        while row < nrows:
            n = min(4, nrows-row)
            dst = []
            for i in range(n):
                d = saved.get(row+i, alt[i])
                dst.append(d)
            for i in range(n): cm1(dst[i], cur[i], step)
            for (r, z) in pend: wr(r, z, neg)
            for i in range(n): cm2(dst[i], cur[i], step)
            pend = [(row+i, dst[i]) for i in range(n)]
            newcur = list(cur); newalt = list(alt)
            for i in range(n):
                if dst[i] == alt[i]: newalt[i] = cur[i]
                newcur[i] = dst[i]
            cur, alt = newcur, [a if a not in saved.values() else None for a in newalt]
            for i in range(4):
                if alt[i] is None: alt[i] = 44 + 2*i if (44+2*i) != cur[i] else 28 + 2*i
            row += n
        for (r, z) in pend: wr(r, z, neg)
    e("s_cmp_eq_u32 s35, 0")
    e("s_cbranch_scc0 KG_XP")
    e("v_add_u32 v15, s37, v15")
    W1, W2, W4, W1K = 16, 18, 20, 22
    cexp(W1, None, 4, 5)
    cexp(W1K, "0x44800000", 6, 7)
    cm1(W2, W1, W1); cm2(W2, W1, W1)
    e("v_mov_b32 v28, 1.0"); e("v_mov_b32 v29, 0")
    e(f"v_mov_b32 v30, v{W1}"); e(f"v_mov_b32 v31, v{W1+1}")
    e(f"v_mov_b32 v32, v{W2}"); e(f"v_mov_b32 v33, v{W2+1}")
    cm1(34, W2, W1); cm1(W4, W2, W2); cm2(34, W2, W1); cm2(W4, W2, W2)
    saved = {8:70, 16:72, 24:74, 32:76}
    chains([28,30,32,34], W4, 33, True, saved)
    cm1(52, 70, W1K); cm1(54, 72, W1K); cm1(56, 74, W1K); cm1(58, 76, W1K)
    wr(33, W1K, True)
    cm2(52, 70, W1K); cm2(54, 72, W1K); cm2(56, 74, W1K); cm2(58, 76, W1K)
    wr(34, 52, True); wr(35, 54, True); wr(36, 56, True); wr(37, 58, True)
    e("s_branch KG_TD")
    e.label("KG_XP")
    e("v_add_u32 v15, s36, v15")
    e("v_lshlrev_b32 v12, 16, v162")
    e("v_mul_f32 v12, v12, v14")
    e("v_mul_f32 v13, v13, v14")
    e("v_add_f32 v28, v12, v12")
    e("v_add_f32 v29, v13, v13")
    W32, W64, W128 = 16, 18, 20
    cexp(W32, "0x42000000", 4, 5)
    cm1(W64, W32, W32); cm1(30, 28, W32); cm2(W64, W32, W32); cm2(30, 28, W32)
    cm1(32, 28, W64); cm1(34, 30, W64); cm1(W128, W64, W64)
    cm2(32, 28, W64); cm2(34, 30, W64); cm2(W128, W64, W64)
    chains([28,30,32,34], W128, 32, False, {})
    e.label("KG_TD")
    e("s_lshl_b32 s39, s35, 1")
    e("s_add_u32 s39, s39, s31")
    e("v_and_b32 v5, 31, v2")
    e("v_lshrrev_b32 v6, 5, v2")
    e("v_lshlrev_b32 v7, 4, v6")
    e(f"v_mul_u32_u24 v8, {PITCH}, v5")
    e("v_add_u32 v16, v7, v8")
    e("v_add_u32 v16, s36, v16")
    e("v_cvt_f32_u32 v9, v5")
    e("s_mov_b32 s40, 0")
    e("s_cmp_eq_u32 s39, 1"); e("s_cselect_b32 s40, 0x43800000, s40")
    e("s_cmp_eq_u32 s39, 2"); e("s_cselect_b32 s40, 0x44000000, s40")
    e("s_cmp_eq_u32 s39, 3"); e("s_cselect_b32 s40, 0x44800000, s40")
    e("v_add_f32 v17, s40, v9")
    e("v_cvt_pk_bf16_f32 v17, v17, v17")
    e("v_lshlrev_b32 v17, 16, v17")
    e("v_subrev_f32 v17, s40, v17")
    e("v_cvt_u32_f32 v17, v17")
    e("v_lshrrev_b32 v18, 3, v17")
    e("v_add_u32 v18, 33, v18")
    e("s_cmp_eq_u32 s39, 3")
    e("s_cselect_b64 vcc, -1, 0")
    e("v_cndmask_b32 v17, v17, v18, vcc")
    e(f"v_mul_u32_u24 v17, {PITCH}, v17")
    e("v_add_u32 v17, v7, v17")
    e("v_add_u32 v17, s37, v17")
    stamp(e, 6)
    lds_inc(e, F_S1, 18)
    lds_wait(e, F_S1, 8, 18, 41, "S1")
    stamp(e, 7)
    def rd(ks):
        b = 20 + 8*(ks % 4)
        e(f"ds_read_b128 v[{b}:{b+3}], v16 offset:{32*ks}")
        e(f"ds_read_b128 v[{b+4}:{b+7}], v17 offset:{32*ks}")
    rd(0); rd(1); rd(2)
    for ks in range(16):
        if ks + 3 < 16:
            rd(ks+3); e("s_waitcnt lgkmcnt(6)")
        else: e(f"s_waitcnt lgkmcnt({2*(15-ks)})")
        b = 20 + 8*(ks % 4)
        C = "0" if ks == 0 else "v[64:79]"
        e(f"v_mfma_f32_32x32x16_bf16 v[64:79], v[{b+4}:{b+7}], v[{b}:{b+3}], {C}")
    e("s_cmp_ge_u32 s24, 4")
    e("s_cbranch_scc1 KG_NOST")
    e("s_waitcnt vmcnt(0)")
    pub1(e, 61, 18)
    lds_inc(e, F_ST, 18)
    e.label("KG_NOST")
    stamp(e, 4)
    e(f"s_mul_i32 s36, s30, {KST}")
    e(f"s_add_u32 s36, s36, {STG}")
    e("v_lshlrev_b32 v7, 6, v5")
    e("v_lshl_add_u32 v7, v6, 3, v7")
    e("v_add_u32 v7, s36, v7")
    e("v_add_u32 v7, 64, v7")
    e("s_mov_b32 s40, 0xff")
    e("s_cmp_eq_u32 s39, 1"); e("s_cselect_b32 s40, 0xff00, s40")
    e("s_cmp_eq_u32 s39, 2"); e("s_cselect_b32 s40, 0xffff0000, s40")
    e("s_cmp_eq_u32 s39, 3"); e("s_cselect_b32 s40, -1, s40")
    e("s_cselect_b32 s42, 2048, 0")
    e("s_mov_b32 s41, s40")
    e("v_add_u32 v7, s42, v7")
    e("v_mov_b32 v20, 0")
    e("v_lshlrev_b32 v21, 2, v2")
    e("v_add_u32 v21, s36, v21")
    e.nop(6)
    for i in range(8): e(f"v_cvt_pk_bf16_f32 v{64+i}, v{64+2*i}, v{65+2*i}")
    e("s_mov_b64 exec, s[40:41]")
    for g in range(4): e(f"ds_write_b64 v7, v[{64+2*g}:{65+2*g}] offset:{16*g}")
    e("s_cmp_lg_u32 s39, 0")
    e("s_cbranch_scc1 KG_NP")
    e("s_mov_b64 exec, 0xffff")
    e("ds_write_b32 v21, v20")
    e("s_mov_b32 s40, -1")
    e("s_mov_b32 s41, 0xffff")
    e("s_mov_b64 exec, s[40:41]")
    e("ds_write_b32 v21, v20 offset:4160")
    e.label("KG_NP")
    e("s_mov_b64 exec, -1")
    lds_inc(e, F_S2, 18)
    lds_wait(e, F_S2, 8, 18, 41, "S2")
    e("s_lshl_b32 s37, s39, 6")
    e("v_add_u32 v5, s37, v2")
    e("v_lshlrev_b32 v6, 4, v5")
    e("v_add_u32 v7, s36, v6")
    e(f"s_mul_i32 s38, s32, {KT_CH}")
    e(f"s_add_u32 s38, s38, {KT}")
    e("s_add_u32 s18, s62, s38")
    e("s_addc_u32 s19, s63, 0")
    e("v_add_u32 v8, 0x1000, v6")
    e("v_add_u32 v30, 4224, v6")
    e(f"v_add_u32 v42, {4224+4096}, v6")
    e(f"ds_read_b128 v[20:23], v7")
    e(f"ds_read_b32 v24, v7 offset:16")
    e(f"ds_read_b128 v[32:35], v7 offset:4096")
    e(f"ds_read_b32 v36, v7 offset:4112")
    e("s_waitcnt lgkmcnt(0)")
    for i in range(4): e(f"v_alignbit_b32 v{26+i}, v{21+i}, v{20+i}, 16")
    e(f"global_store_dwordx4 v6, v[20:23], s[18:19]")
    e(f"global_store_dwordx4 v30, v[26:29], s[18:19]")
    e("v_cmp_gt_u32 vcc, 8, v5")
    e("s_and_saveexec_b64 s[40:41], vcc")
    e("s_cbranch_execz KG_RB_SKIP")
    for i in range(4): e(f"v_alignbit_b32 v{38+i}, v{33+i}, v{32+i}, 16")
    e(f"global_store_dwordx4 v8, v[32:35], s[18:19]")
    e(f"global_store_dwordx4 v42, v[38:41], s[18:19]")
    e.label("KG_RB_SKIP")
    e("s_mov_b64 exec, -1")

S = [[16,32],[48,64]]; O = [80,96]; Q = [112,116]; KR = [120,124]; VR = [[128,132],[136,140]]
IDX = 144; VK, VV = 145, 146; T0 = 148

def attn(e):
    e("s_lshl_b32 s27, s25, 2")
    e("s_and_b32 s28, s26, 3")
    e("s_add_u32 s27, s27, s28")
    e("s_lshr_b32 s28, s26, 2")
    e("s_and_b32 s29, s24, 3")
    e("s_lshr_b32 s30, s24, 2")
    e("v_lshlrev_b32 v3, 4, v2")
    srd(e, 12, 62, 63, 0x800000)
    e("s_lshl_b32 s34, s30, 16")
    e(f"v_add_u32 v{VK}, s34, v3")
    e("v_and_b32 v4, 15, v2")
    e("v_lshrrev_b32 v5, 5, v2")
    e("v_lshlrev_b32 v4, 4, v4")
    e("v_lshl_add_u32 v4, v5, 8, v4")
    e(f"v_add_u32 v{VV}, s34, v4")
    e(f"v_mov_b32 v{IDX}, 0xdddd")
    e("v_and_b32 v4, 31, v2")
    e("v_cmp_eq_u32 vcc, 16, v4")
    e("v_cmp_eq_u32 s[44:45], 20, v4")
    e("s_nop 1")
    e("s_or_b64 vcc, vcc, s[44:45]")
    e("v_mov_b32 v5, 0x3f803f80")
    e("v_mov_b32 v6, 0")
    e("s_nop 1")
    e("v_cndmask_b32 v6, v6, v5, vcc")
    for b in range(2):
        for hf in range(2):
            for i in range(4): e(f"v_mov_b32 v{VR[b][hf]+i}, v6")
    e("s_mov_b32 s46, 0xffff")
    e("s_mov_b32 s47, 0xffff")
    for t in range(2):
        for i in range(16): e(f"v_mov_b32 v{O[t]+i}, 0")
    e("s_lshl_b32 s35, s29, 11")
    e(f"s_add_u32 s35, s35, {QB}")
    e("v_add_u32 v4, s35, v3")
    def ldK(t):  return f"ds_read_b128 v[{KR[t&1]}:{KR[t&1]+3}], v{VK} offset:{t*1024}"
    def ldV(t):
        b = t & 1
        return ["s_mov_b64 exec, s[46:47]",
                f"ds_read_b128 v[{VR[b][0]}:{VR[b][0]+3}], v{VV} offset:{32768+t*1024}",
                f"ds_read_b128 v[{VR[b][1]}:{VR[b][1]+3}], v{VV} offset:{32768+t*1024+512}",
                "s_mov_b64 exec, -1"]
    def qk(t, tile):
        s = S[t&1][tile]
        return f"v_mfma_f32_32x32x16_bf16 v[{s}:{s+15}], v[{KR[t&1]}:{KR[t&1]+3}], v[{Q[tile]}:{Q[tile]+3}], 0"
    def pv(t, tile, hf):
        s = S[t&1][tile] + 8*hf; v = VR[t&1][hf]; o = O[tile]
        return f"v_smfmac_f32_32x32x32_bf16 v[{o}:{o+15}], v[{v}:{v+3}], v[{s}:{s+7}], v{IDX}"
    stamp(e, 8)
    e("s_barrier")
    stamp(e, 9)
    e(f"ds_read_b128 v[{Q[0]}:{Q[0]+3}], v4")
    e(f"ds_read_b128 v[{Q[1]}:{Q[1]+3}], v4 offset:1024")
    e(ldK(0)); e(ldK(1))
    for l in ldV(0): e(l)
    e("s_cmp_eq_u32 s30, 0")
    e("s_cbranch_scc1 AT_P0")
    e("s_setprio 1")
    e.label("AT_P0")
    e("s_waitcnt lgkmcnt(0)")
    e(qk(0,0)); e(qk(0,1))
    e.nop(10)
    NT = 32
    for t in range(NT):
        sa, sb = S[t&1]
        ex = lambda r: e(f"v_exp_f32 v{r}, v{r}")
        if t == TB2:
            e("s_waitcnt vmcnt(0)")
            e("s_barrier")
        if t == OPT.get('flip', 16):
            e("s_cmp_eq_u32 s30, 0")
            e("s_cbranch_scc1 AT_P1")
            e("s_setprio 0")
            e("s_branch AT_P2")
            e.label("AT_P1")
            e("s_setprio 1")
            e.label("AT_P2")
        e("s_waitcnt lgkmcnt(0)")
        if t+1 < NT: e(qk(t+1, 0))
        for i in range(0,4): ex(sa+i)
        if t > 0: e(pv(t-1, 1, 1))
        if t+2 < NT: e(ldK(t+2))
        if t+1 < NT:
            for l in ldV(t+1): e(l)
        for i in range(4,9): ex(sa+i)
        if t+1 < NT: e(qk(t+1, 1))
        for i in range(9,14): ex(sa+i)
        e(pv(t, 0, 0))
        for i in range(14,16): ex(sa+i)
        for i in range(0,3): ex(sb+i)
        e(pv(t, 0, 1))
        for i in range(3,10): ex(sb+i)
        e(pv(t, 1, 0))
        for i in range(10,16): ex(sb+i)
    e("s_nop 1")
    e(pv(NT-1, 1, 1))
    e("s_setprio 0")
    stamp(e, 10)
    e.nop(14)
    finalize(e, True)
    e("s_branch AT_DONE")
    e.label("AT_FALLBACK")
    fallback(e)
    finalize(e, False)
    e.label("AT_DONE")

def finalize(e, check):
    sfx = "C" if check else "F"
    if check:
        e(f"v_mov_b32 v{T0}, 0")
        for t in range(2):
            for i in range(8): e(f"v_fma_f32 v{T0}, v{O[t]+i}, 0, v{T0}")
        e("s_mov_b32 s48, 0x21800000")
        e("s_mov_b32 s49, 0x5d800000")
        e(f"v_cmp_u_f32 vcc, v{T0}, v{T0}")
        for t in range(2):
            e(f"v_cmp_nle_f32 s[50:51], s48, v{O[t]+8}")
            e(f"v_cmp_nge_f32 s[58:59], s49, v{O[t]+8}")
            e("s_nop 1")
            e("s_or_b64 vcc, vcc, s[50:51]")
            e("s_or_b64 vcc, vcc, s[58:59]")
        e("s_cmp_eq_u64 vcc, 0")
        e(f"s_cbranch_scc1 AT_OK{sfx}")
        e("v_mov_b32 v4, 1")
        e(f"v_mov_b32 v5, {F_FALL}")
        e("ds_write_b32 v5, v4")
        e.label(f"AT_OK{sfx}")
    else:
        e("s_barrier")
    e("s_mul_i32 s52, s24, 2304")
    e(f"s_add_u32 s52, s52, {EXB}")
    e("v_lshlrev_b32 v4, 4, v2")
    e("v_add_u32 v4, s52, v4")
    e("v_lshlrev_b32 v5, 2, v2")
    e("v_add_u32 v5, s52, v5")
    if check:
        e("s_waitcnt lgkmcnt(0)")
        e("s_barrier")
    e("s_cmp_eq_u32 s30, 0")
    e(f"s_cbranch_scc1 AT_SB{sfx}")
    e(f"ds_write_b128 v4, v[{O[0]}:{O[0]+3}]")
    e(f"ds_write_b128 v4, v[{O[0]+4}:{O[0]+7}] offset:1024")
    e(f"ds_write_b32 v5, v{O[0]+8} offset:2048")
    e("s_nop 1")
    for i in range(9): e(f"v_mov_b32 v{O[0]+i}, v{O[1]+i}")
    e(f"s_branch AT_SD{sfx}")
    e.label(f"AT_SB{sfx}")
    e(f"ds_write_b128 v4, v[{O[1]}:{O[1]+3}]")
    e(f"ds_write_b128 v4, v[{O[1]+4}:{O[1]+7}] offset:1024")
    e(f"ds_write_b32 v5, v{O[1]+8} offset:2048")
    e.label(f"AT_SD{sfx}")
    e("s_waitcnt lgkmcnt(0)")
    e("s_barrier")
    e("s_xor_b32 s53, s24, 4")
    e("s_mul_i32 s53, s53, 2304")
    e(f"s_add_u32 s53, s53, {EXB}")
    e("v_lshlrev_b32 v4, 4, v2")
    e("v_add_u32 v4, s53, v4")
    e("v_lshlrev_b32 v5, 2, v2")
    e("v_add_u32 v5, s53, v5")
    e(f"ds_read_b128 v[{T0}:{T0+3}], v4")
    e(f"ds_read_b128 v[{T0+4}:{T0+7}], v4 offset:1024")
    e(f"ds_read_b32 v{T0+8}, v5 offset:2048")
    if check:
        e(f"v_mov_b32 v6, {F_FALL}")
        e(f"ds_read_b32 v7, v6")
    e("s_waitcnt lgkmcnt(0)")
    if check:
        e("v_readfirstlane_b32 s54, v7")
        e("s_nop 3")
        e("s_cmp_lg_u32 s54, 0")
        e("s_cbranch_scc1 AT_FALLBACK")
    for i in range(9): e(f"v_add_f32 v{O[0]+i}, v{O[0]+i}, v{T0+i}")
    e(f"v_rcp_f32 v{T0}, v{O[0]+8}")
    e("s_nop 0")
    for i in range(8): e(f"v_mul_f32 v{O[0]+i}, v{O[0]+i}, v{T0}")
    for i in range(4): e(f"v_cvt_pk_bf16_f32 v{T0+4+i}, v{O[0]+2*i}, v{O[0]+2*i+1}")
    e("s_lshl_b32 s55, s28, 3")
    e("s_lshl_b32 s56, s29, 1")
    e("s_add_u32 s55, s55, s56")
    e("s_add_u32 s55, s55, s30")
    e("s_lshl_b32 s55, s55, 5")
    e("s_add_u32 s55, s55, s27")
    e("s_lshl_b32 s55, s55, 10")
    e(f"s_add_u32 s55, s55, {OW}")
    e(f"buffer_store_dwordx4 v[{T0+4}:{T0+7}], v3, s[12:15], s55 offen sc1")

def fallback(e):
    M = [T0+10, T0+11]
    e(f"v_mov_b32 v{M[0]}, 0xff800000")
    e(f"v_mov_b32 v{M[1]}, 0xff800000")
    e("v_lshlrev_b32 v4, 4, v2")
    e("s_mov_b32 s57, 0")
    e.label("FB_MAX")
    e(f"ds_read_b128 v[{KR[0]}:{KR[0]+3}], v4")
    e("s_waitcnt lgkmcnt(0)")
    for t in range(2):
        s = S[0][t]
        e(f"v_mfma_f32_32x32x16_bf16 v[{s}:{s+15}], v[{KR[0]}:{KR[0]+3}], v[{Q[t]}:{Q[t]+3}], 0")
    e.nop(16)
    for t in range(2):
        s = S[0][t]
        for i in range(0,16,2): e(f"v_max3_f32 v{M[t]}, v{s+i}, v{s+i+1}, v{M[t]}")
    e("s_add_u32 s57, s57, 1")
    e("s_cmp_eq_u32 s57, 32")
    e("s_movk_i32 s58, 1024")
    e("s_cselect_b32 s58, 33792, s58")
    e("v_add_u32 v4, s58, v4")
    e("s_cmp_lt_u32 s57, 64")
    e("s_cbranch_scc1 FB_MAX")
    for t in range(2):
        e(f"v_mov_b32 v5, v{M[t]}")
        e("s_nop 1")
        e(f"v_permlane32_swap_b32 v{M[t]}, v5")
        e("s_nop 1")
        e(f"v_max_f32 v{M[t]}, v{M[t]}, v5")
        for i in range(16): e(f"v_sub_f32 v{S[1][t]+i}, 0, v{M[t]}")
    for t in range(2):
        for i in range(16): e(f"v_mov_b32 v{O[t]+i}, 0")
    e(f"v_mov_b32 v4, v{VK}")
    e(f"v_mov_b32 v5, v{VV}")
    e("s_mov_b32 s57, 0")
    e.label("FB_MAIN")
    e(f"ds_read_b128 v[{KR[0]}:{KR[0]+3}], v4")
    e("s_mov_b64 exec, s[46:47]")
    e(f"ds_read_b128 v[{VR[0][0]}:{VR[0][0]+3}], v5 offset:32768")
    e(f"ds_read_b128 v[{VR[0][1]}:{VR[0][1]+3}], v5 offset:33280")
    e("s_mov_b64 exec, -1")
    e("s_waitcnt lgkmcnt(0)")
    for t in range(2):
        s = S[0][t]; c = S[1][t]
        e(f"v_mfma_f32_32x32x16_bf16 v[{s}:{s+15}], v[{KR[0]}:{KR[0]+3}], v[{Q[t]}:{Q[t]+3}], v[{c}:{c+15}]")
    e.nop(16)
    for t in range(2):
        for i in range(16): e(f"v_exp_f32 v{S[0][t]+i}, v{S[0][t]+i}")
    e("s_nop 2")
    for t in range(2):
        for hf in range(2):
            s = S[0][t]+8*hf; v = VR[0][hf]; o = O[t]
            e(f"v_smfmac_f32_32x32x32_bf16 v[{o}:{o+15}], v[{v}:{v+3}], v[{s}:{s+7}], v{IDX}")
    e("v_add_u32 v4, 1024, v4")
    e("v_add_u32 v5, 1024, v5")
    e("s_add_u32 s57, s57, 1")
    e("s_cmp_lt_u32 s57, 32")
    e("s_cbranch_scc1 FB_MAIN")
    e.nop(16)

def b_phase2(e):
    e("s_sub_u32 s27, s24, 8")
    e("s_lshr_b32 s28, s27, 1")
    e("s_and_b32 s29, s27, 1")
    e("s_lshl_b32 s30, s25, 6")
    e("s_lshl_b32 s31, s26, 1")
    e("s_add_u32 s30, s30, s31")
    e("s_add_u32 s30, s30, s28")
    e("v_lshlrev_b32 v3, 4, v2")
    e("s_lshl_b32 s45, s25, 2")
    e("s_and_b32 s47, s26, 3")
    e("s_add_u32 s45, s45, s47")
    e("s_lshl_b32 s45, s45, 6")
    e("s_lshl_b32 s47, s28, 5")
    e("s_add_u32 s46, s45, s47")
    e("s_lshl_b32 s46, s46, 10")
    e(f"s_mul_i32 s47, s29, {VF-KF}")
    e("s_add_u32 s46, s46, s47")
    e(f"s_add_u32 s46, s46, {KF}")
    e("s_lshl_b32 s47, s28, 16")
    e("s_lshl_b32 s48, s29, 15")
    e("s_add_u32 s47, s47, s48")
    e("s_lshr_b32 s49, s26, 2")
    e("s_lshl_b32 s49, s49, 3")
    e("s_add_u32 s49, s49, s45")
    e("s_lshl_b32 s50, s27, 1")
    e("s_add_u32 s49, s49, s50")
    e("s_lshl_b32 s49, s49, 10")
    e("s_lshl_b32 s50, s27, 11")
    e(f"s_add_u32 s50, s50, {QB}")
    srd(e, 12, 62, 63, 0x1100000)
    e("s_cmp_eq_u32 s27, 1")
    e("s_cbranch_scc0 B_NUT")
    ut_task(e)
    ut_finish_a(e)
    lds_wait(e, F_ST, 4, 4, 51, "ST")
    get_nonce(e, 4)
    ut_finish_b(e)
    e("s_waitcnt vmcnt(0)")
    e("s_lshl_b32 s51, s25, 5")
    e("s_add_u32 s51, s51, s26")
    e("s_lshl_b32 s51, s51, 2")
    e(f"s_add_u32 s51, s51, {FE2}")
    pub1(e, 51, 4)
    e.label("B_NUT")
    e("s_cmp_lg_u32 s27, 0")
    e("s_cbranch_scc1 B_W1")
    lds_wait(e, F_ST, 4, 4, 51, "ST1")
    get_nonce(e, 4)
    stamp(e, 3)
    e("s_lshl_b32 s51, s25, 1")
    e("s_bfe_u32 s52, s26, 0x10001")
    e("s_add_u32 s51, s51, s52")
    e("s_lshl_b32 s51, s51, 8")
    e(f"s_add_u32 s51, s51, {FE1}")
    gpoll(e, None, 64, 4, 51, "E1")
    lds_set(e, F_F1, 4)
    e("s_branch B_G1")
    e.label("B_W1")
    lds_wait(e, F_F1, 1, 4, 51, "F1")
    e.label("B_G1")
    stamp(e, 4)
    def kv():
        e("s_mov_b32 m0, s47")
        e("s_add_u32 s47, s47, 1024")
        e("buffer_load_dwordx4 v3, s[12:15], s46 offen sc1 lds")
        e("s_add_u32 s46, s46, 1024")
    e("s_mov_b32 m0, s50")
    e("s_add_u32 s51, s49, 1024")
    e("buffer_load_dwordx4 v3, s[12:15], s49 offen sc1 lds")
    e("s_add_u32 m0, s50, 1024")
    e("s_nop 0")
    e("buffer_load_dwordx4 v3, s[12:15], s51 offen sc1 lds")
    NC0 = TB2 + 2
    for t in range(NC0): kv()
    e("s_waitcnt vmcnt(0)")
    stamp(e, 5)
    e("s_barrier")
    for t in range(NC0, 32): kv()
    e("s_waitcnt vmcnt(0)")
    e("s_barrier")
    e("s_setprio 3")
    e("s_cmp_lg_u32 s27, 0")
    e("s_cbranch_scc1 B_W2")
    e("s_lshl_b32 s51, s25, 7")
    e(f"s_add_u32 s51, s51, {FE2}")
    gpoll(e, None, 32, 4, 51, "E2")
    lds_set(e, F_F2, 4)
    e("s_branch B_G2")
    e.label("B_W2")
    lds_wait(e, F_F2, 1, 4, 51, "F2")
    e.label("B_G2")
    e("s_lshl_b32 s31, s30, 12")
    e(f"s_add_u32 s31, s31, {UT}")
    e("s_lshl_b32 s32, s29, 11")
    e("s_add_u32 s31, s31, s32")
    e("s_mul_i32 s33, s28, 6144")
    e(f"s_add_u32 s33, s33, {UB}")
    e("s_mul_i32 s34, s29, 3072")
    e("s_add_u32 s34, s34, s33")
    e("s_add_u32 m0, s34, 512")
    e("s_add_u32 s35, s31, 1024")
    e("buffer_load_dwordx4 v3, s[12:15], s31 offen sc1 lds")
    e("s_add_u32 m0, s34, 2048")
    e("s_nop 0")
    e("buffer_load_dwordx4 v3, s[12:15], s35 offen sc1 lds")
    e("s_load_dwordx2 s[4:5], s[0:1], 72")
    e("v_and_b32 v4, 31, v2")
    e("v_lshrrev_b32 v5, 5, v2")
    e("v_mul_u32_u24 v6, 1536, v5")
    e("v_lshl_add_u32 v6, v4, 4, v6")
    e("v_add_u32 v6, s34, v6")
    for i in range(4): e(f"v_mov_b32 v{8+i}, 0")
    e("ds_write_b128 v6, v[8:11]")
    e(f"s_mul_i32 s35, s30, {KT_CH}")
    e(f"s_add_u32 s35, s35, {KT}")
    e("s_add_u32 s36, s62, s35")
    e("s_addc_u32 s37, s63, 0")
    e("v_and_b32 v7, 15, v4")
    e("v_lshlrev_b32 v12, 1, v7")
    e("v_lshl_add_u32 v12, v5, 3, v12")
    e("v_lshrrev_b32 v7, 4, v4")
    e("v_lshl_add_u32 v12, v7, 1, v12")
    e("v_lshlrev_b32 v12, 1, v12")
    e("v_xor_b32 v7, 1, v7")
    e("v_mul_u32_u24 v7, 4224, v7")
    e("v_add_u32 v12, v12, v7")
    e("s_lshl_b32 s38, s30, 1")
    e("v_mov_b32 v7, s38")
    e("s_waitcnt lgkmcnt(0)")
    e("global_load_ushort v13, v7, s[4:5]")
    e("s_waitcnt vmcnt(0) lgkmcnt(0)")
    e("v_lshlrev_b32 v13, 16, v13")
    e("s_lshl_b32 s51, s28, 2")
    e(f"s_add_u32 s51, s51, {F_U0}")
    e("v_mov_b32 v16, s51")
    e("v_mov_b32 v17, 1")
    e("s_mov_b64 exec, 1")
    e("ds_add_u32 v16, v17")
    e("s_mov_b64 exec, -1")
    e("s_mov_b32 s52, 0x400000")
    e.label("B_UW")
    e("ds_read_b32 v17, v16")
    e("s_sub_u32 s52, s52, 1")
    e("s_waitcnt lgkmcnt(0)")
    e("v_readfirstlane_b32 s51, v17")
    e("s_cmp_eq_u32 s52, 0")
    e("s_cbranch_scc1 B_UD")
    e("s_cmp_ge_u32 s51, 2")
    e("s_cbranch_scc1 B_UD")
    e("s_sleep 1")
    e("s_branch B_UW")
    e.label("B_UD")
    stamp(e, 6)
    e("s_cmp_eq_u32 s29, 0")
    e("s_cbranch_scc0 CV_Y")
    conv_role(e, 0)
    e("s_branch CV_DONE")
    e.label("CV_Y")
    conv_role(e, 1)
    e.label("CV_DONE")
    e("s_waitcnt vmcnt(0)")
    stamp(e, 8)
    lds_inc(e, F_CV, 4)
    e("s_cmp_lg_u32 s27, 0")
    e("s_cbranch_scc1 B_NOY")
    lds_wait(e, F_CV, 4, 4, 51, "CV")
    e("s_lshl_b32 s51, s25, 5")
    e("s_add_u32 s51, s51, s26")
    e("s_lshl_b32 s51, s51, 2")
    e(f"s_add_u32 s51, s51, {FE3}")
    pub1(e, 51, 4)
    ytask(e)
    e.label("B_NOY")
    e("s_load_dwordx2 s[4:5], s[0:1], 16")
    e("s_lshl_b32 s51, s26, 14")
    e("s_lshl_b32 s52, s27, 12")
    e("s_add_u32 s51, s51, s52")
    e("v_and_b32 v4, 31, v2")
    e("v_lshlrev_b32 v4, 7, v4")
    e("v_add_u32 v4, s51, v4")
    e("s_waitcnt lgkmcnt(0)")
    e("global_load_dword v150, v4, s[4:5]")
    e("s_setprio 0")
    stamp(e, 9)

def conv_role(e, role):
    ct = role
    NS = 64 if role == 0 else 96
    SP = (NS//2) - 1
    e(f"v_sub_u32 v7, 3, v5")
    e("v_mul_u32_u24 v14, 1536, v7")
    e("v_lshl_add_u32 v14, v4, 4, v14")
    e("v_add_u32 v14, s33, v14")
    e(f"v_add_u32 v14, {(32+32*ct-SP)*16}, v14")
    e("v_subrev_u32 v15, 3072, v14")
    ACC0, ACC1 = 16, 32
    AR = [48+4*i for i in range(8)]
    A2 = [80+4*i for i in range(6)]
    BR = [104+4*i for i in range(4)]
    PA, PB, PA2 = 6, 3, 4
    order = []
    def ldA(s):
        e(f"global_load_dwordx4 v[{AR[s%8]}:{AR[s%8]+3}], v12, s[36:37] offset:{32*s}"); order.append(('a', s))
    def ldA2(s):
        if role == 0 and 32 <= s < 64:
            e(f"global_load_dwordx4 v[{A2[s%6]}:{A2[s%6]+3}], v12, s[36:37] offset:{32*(s+64)}"); order.append(('b', s))
    def ldB(s):
        sp = s >> 1; r = 14 + (s & 1)
        e(f"ds_read_b128 v[{BR[s%4]}:{BR[s%4]+3}], v{r} offset:{(SP-sp)*16}")
    for s_ in range(PA): ldA(s_)
    for s_ in range(PB): ldB(s_)
    for s_ in range(NS):
        if s_ + PA < NS: ldA(s_ + PA)
        ldA2(s_ + PA2)
        if s_ + PB < NS: ldB(s_ + PB)
        need = [i for i, x in enumerate(order) if x == ('a', s_) or x == ('b', s_)]
        n = len(order) - 1 - max(need)
        nb = min(PB, NS - 1 - s_)
        e(f"s_waitcnt vmcnt({n}) lgkmcnt({nb})")
        a = AR[s_%8]; b = BR[s_%4]
        acc = ACC0 if role == 0 else ACC1
        C = "0" if s_ == 0 else f"v[{acc}:{acc+15}]"
        e(f"v_mfma_f32_32x32x16_bf16 v[{acc}:{acc+15}], v[{a}:{a+3}], v[{b}:{b+3}], {C}")
        if role == 0 and s_ >= 32:
            a2 = A2[s_%6]
            C = "0" if s_ == 32 else f"v[{ACC1}:{ACC1+15}]"
            e(f"v_mfma_f32_32x32x16_bf16 v[{ACC1}:{ACC1+15}], v[{a2}:{a2+3}], v[{b}:{b+3}], {C}")
    stamp(e, 7)
    e("s_lshl_b32 s40, s28, 12")
    e(f"s_add_u32 s40, s40, {STG}")
    e("v_add_u32 v6, s40, v3")
    e("s_lshl_b32 s41, s28, 2")
    e(f"s_add_u32 s41, s41, {F_M0}")
    e("v_mov_b32 v9, s41")
    e("v_mul_u32_u24 v7, 1536, v5")
    e("v_lshl_add_u32 v7, v4, 4, v7")
    e("v_add_u32 v7, s33, v7")
    for g in range(2): e(f"ds_read_b128 v[{64+4*g}:{67+4*g}], v7 offset:{g*3072+(32+32*ct)*16}")
    e("v_lshlrev_b32 v8, 10, v5")
    e("v_lshl_add_u32 v8, v4, 4, v8")
    e("s_lshl_b32 s43, s30, 12")
    e(f"s_add_u32 s43, s43, {YT + ct*512}")
    e("v_add_u32 v8, s43, v8")
    e.nop(6)
    if role == 0:
        for i in range(4): e(f"ds_write_b128 v6, v[{ACC1+4*i}:{ACC1+4*i+3}] offset:{1024*i}")
        e("s_waitcnt lgkmcnt(0)")
        e("v_mov_b32 v10, 1")
        e("s_mov_b64 exec, 1")
        e("ds_write_b32 v9, v10")
        e("s_mov_b64 exec, -1")
        ACC = ACC0
    else:
        e("s_mov_b32 s45, 0x400000")
        e.label("CV_SPIN")
        e("ds_read_b32 v10, v9")
        e("s_sub_u32 s45, s45, 1")
        e("s_waitcnt lgkmcnt(0)")
        e("v_readfirstlane_b32 s42, v10")
        e("s_cmp_eq_u32 s45, 0")
        e("s_cbranch_scc1 CV_GO")
        e("s_cmp_lg_u32 s42, 0")
        e("s_cbranch_scc1 CV_GO")
        e("s_sleep 1")
        e("s_branch CV_SPIN")
        e.label("CV_GO")
        for i in range(4): e(f"ds_read_b128 v[{48+4*i}:{48+4*i+3}], v6 offset:{1024*i}")
        e("s_waitcnt lgkmcnt(0)")
        for i in range(16): e(f"v_add_f32 v{ACC1+i}, v{ACC1+i}, v{48+i}")
        ACC = ACC1
    e("s_waitcnt lgkmcnt(0)")
    for g in range(2):
        for i in range(4):
            dw = 64 + 4*g + (3 - i)
            t = 80
            e(f"v_and_b32 v{t}, 0xffff0000, v{dw}")
            e(f"v_lshlrev_b32 v{t+1}, 16, v{dw}")
            e(f"v_mul_f32 v{t}, v{t}, v13")
            e(f"v_mul_f32 v{t+1}, v{t+1}, v13")
            e(f"v_cvt_pk_bf16_f32 v{t+2}, v{t}, v{t+1}")
            e(f"v_cvt_pk_bf16_f32 v{t+3}, v{ACC+4*g+i}, v{ACC+8+4*g+i}")
            e(f"v_lshlrev_b32 v{t}, 16, v{t+2}")
            e(f"v_and_b32 v{t+1}, 0xffff0000, v{t+2}")
            e(f"v_lshlrev_b32 v{t+4}, 16, v{t+3}")
            e(f"v_and_b32 v{t+5}, 0xffff0000, v{t+3}")
            e(f"v_add_f32 v{t}, v{t}, v{t+4}")
            e(f"v_add_f32 v{t+1}, v{t+1}, v{t+5}")
            e(f"v_cvt_pk_bf16_f32 v{88+4*g+i}, v{t}, v{t+1}")
        e(f"global_store_dwordx4 v8, v[{88+4*g}:{91+4*g}], s[62:63] offset:{2048*g} sc1")

YB = 131072
def ytask(e):
    e("s_load_dwordx2 s[4:5], s[0:1], 80")
    e("s_lshl_b32 s51, s25, 7")
    e(f"s_add_u32 s51, s51, {FE3}")
    gpoll(e, None, 32, 8, 51, "E3")
    e("s_and_b32 s51, s26, 3")
    e("s_lshr_b32 s52, s26, 2")
    e("v_and_b32 v16, 7, v2")
    e("v_lshrrev_b32 v17, 3, v2")
    e("s_lshl_b32 s53, s25, 18")
    e("s_lshl_b32 s54, s51, 10")
    e("s_add_u32 s53, s53, s54")
    e("s_lshl_b32 s54, s52, 7")
    e("s_add_u32 s53, s53, s54")
    e(f"s_add_u32 s53, s53, {YT}")
    e("v_lshlrev_b32 v18, 15, v17")
    e("v_lshl_add_u32 v18, v16, 4, v18")
    e("v_add_u32 v18, s53, v18")
    for k in range(8):
        e(f"global_load_dwordx4 v[{32+4*k}:{35+4*k}], v18, s[62:63] sc1")
        if k < 7: e("v_add_u32 v18, 0x1000, v18")
    e("s_lshl_b32 s53, s52, 8")
    e("s_lshl_b32 s54, s51, 3")
    e("s_add_u32 s53, s53, s54")
    e("v_lshlrev_b32 v19, 5, v17")
    e("v_add_u32 v19, s53, v19")
    e("v_lshlrev_b32 v19, 11, v19")
    e("v_lshl_add_u32 v19, v16, 4, v19")
    e("s_lshl_b32 s53, s25, 7")
    e("s_add_u32 s53, s53, 1024")
    e("v_add_u32 v19, s53, v19")
    e("v_lshlrev_b32 v20, 7, v16")
    e("v_lshl_add_u32 v20, v17, 4, v20")
    e(f"v_add_u32 v20, {YB}, v20")
    e("v_lshlrev_b32 v21, 4, v2")
    e(f"v_add_u32 v21, {YB}, v21")
    e("s_mov_b32 s54, 0x05040100")
    e("s_mov_b32 s55, 0x07060302")
    e("s_waitcnt vmcnt(0) lgkmcnt(0)")
    for t in range(8):
        sel = "s54" if t % 2 == 0 else "s55"
        o = 64 + 4*(t % 4)
        for c2 in range(4):
            lo = 32 + 4*(2*c2) + (t >> 1); hi = 32 + 4*(2*c2+1) + (t >> 1)
            e(f"v_perm_b32 v{o+c2}, v{hi}, v{lo}, {sel}")
        e(f"ds_write_b128 v20, v[{o}:{o+3}] offset:{1024*t}")
    e("s_waitcnt lgkmcnt(0)")
    for t in range(8): e(f"ds_read_b128 v[{32+4*t}:{35+4*t}], v21 offset:{1024*t}")
    for t in range(8):
        e(f"s_waitcnt lgkmcnt({7-t})")
        e(f"global_store_dwordx4 v19, v[{32+4*t}:{35+4*t}], s[4:5]")
        if t < 7: e("v_add_u32 v19, 0x800, v19")

OB3 = 131072 + 8192
def p3_ids(e):
    e("s_lshl_b32 s27, s25, 3")
    e("s_and_b32 s28, s26, 7")
    e("s_add_u32 s27, s27, s28")
    e("s_lshr_b32 s28, s26, 3")

def p3_loader(e):
    e("s_load_dwordx2 s[4:5], s[0:1], 16")
    p3_ids(e)
    e("s_sub_u32 s23, s24, 8")
    e("v_lshlrev_b32 v3, 4, v2")
    e("v_lshrrev_b32 v4, 4, v2")
    e("v_and_b32 v5, 15, v2")
    e("v_lshlrev_b32 v6, 2, v4")
    e("v_xor_b32 v5, v5, v6")
    e("v_lshlrev_b32 v4, 10, v4")
    e("v_lshl_add_u32 v4, v5, 4, v4")
    e("s_lshl_b32 s34, s23, 17")
    e("s_lshl_b32 s35, s23, 15")
    e("s_lshl_b32 s32, s27, 5")
    e("s_lshl_b32 s33, s23, 3")
    e("s_add_u32 s32, s32, s33")
    e("s_lshl_b32 s32, s32, 10")
    e(f"s_add_u32 s32, s32, {OW}")
    e("s_lshl_b32 s33, s23, 13")
    e(f"s_add_u32 s33, s33, 131072")
    srd(e, 12, 62, 63, 0x800000)
    e("s_lshl_b32 s29, s28, 8")
    e("s_waitcnt lgkmcnt(0)")
    e("s_add_u32 s4, s4, s29")
    e("s_addc_u32 s5, s5, 0")
    e("s_mov_b32 s16, s4")
    e("s_and_b32 s17, s5, 0xffff")
    e("s_sub_u32 s18, 524288, s29")
    e("s_mov_b32 s19, 0x20000")
    e("s_lshl_b32 s51, s27, 7")
    e(f"s_add_u32 s51, s51, {FE4}")
    e("s_barrier")
    e("s_barrier")
    e(f"v_mov_b32 v6, {F_FALL}")
    e("ds_read_b32 v7, v6")
    e("s_waitcnt lgkmcnt(0)")
    e("v_readfirstlane_b32 s36, v7")
    e("s_nop 3")
    e("s_cmp_eq_u32 s36, 0")
    e("s_cbranch_scc1 P3L_NOFB")
    e("s_barrier")
    e("s_barrier")
    e.label("P3L_NOFB")
    get_nonce(e, 6)
    for i in range(32):
        e(f"s_add_u32 m0, s35, {i*1024}")
        e(f"s_add_u32 s36, s34, {i*4096}")
        e("buffer_load_dwordx4 v4, s[16:19], s36 offen lds")
    e("s_barrier")
    stamp(e, 10)
    gpoll(e, None, 32, 8, 51, "E4")
    stamp(e, 11)
    for i in range(8):
        e(f"s_add_u32 m0, s33, {i*1024}")
        e(f"s_add_u32 s36, s32, {i*1024}")
        e("buffer_load_dwordx4 v3, s[12:15], s36 offen sc1 lds")
    e("s_waitcnt vmcnt(0)")
    e("s_barrier")

def p3_compute(e):
    e("s_load_dwordx2 s[6:7], s[0:1], 80")
    p3_ids(e)
    e("v_lshlrev_b32 v3, 4, v2")
    e("v_add_u32 v6, 131072, v3")
    e("v_lshrrev_b32 v7, 5, v2")
    e("v_bfe_u32 v8, v2, 2, 2")
    e("v_lshl_add_u32 v7, v7, 2, v8")
    e("v_bfe_u32 v9, v2, 4, 1")
    e("v_lshlrev_b32 v9, 1, v9")
    e("v_bfe_u32 v11, v2, 1, 1")
    e("v_add_u32 v9, v9, v11")
    e("s_lshl_b32 s37, s24, 2")
    e("v_add_u32 v9, s37, v9")
    e("v_lshlrev_b32 v8, 2, v8")
    e("v_xor_b32 v9, v9, v8")
    e("v_lshlrev_b32 v7, 8, v7")
    e("v_lshl_add_u32 v7, v9, 4, v7")
    e("v_and_b32 v9, 1, v2")
    e("v_lshl_add_u32 v7, v9, 3, v7")
    e("v_add_u32 v12, 0x10000, v7")
    e("v_and_b32 v10, 31, v2")
    e("v_lshlrev_b32 v10, 11, v10")
    e("v_lshrrev_b32 v9, 5, v2")
    e("v_lshl_add_u32 v10, v9, 3, v10")
    e("s_lshl_b32 s36, s27, 16")
    e("s_lshl_b32 s37, s28, 8")
    e("s_add_u32 s36, s36, s37")
    e("s_lshl_b32 s37, s24, 6")
    e("s_add_u32 s36, s36, s37")
    e("v_add_u32 v10, s36, v10")
    ACC = 16
    def rd(hd):
        b = 32 + 8*(hd % 4)
        va, ho = (7, hd) if hd < 16 else (12, hd-16)
        e(f"ds_read_b128 v[{b}:{b+3}], v6 offset:{hd*1024}")
        e(f"ds_read_b64_tr_b16 v[{b+4}:{b+5}], v{va} offset:{ho*4096}")
        e(f"ds_read_b64_tr_b16 v[{b+6}:{b+7}], v{va} offset:{ho*4096+2048}")
    e("s_barrier")
    e("s_barrier")
    rd(0); rd(1); rd(2)
    for hd in range(32):
        if hd + 3 < 32:
            rd(hd+3); e("s_waitcnt lgkmcnt(9)")
        else: e(f"s_waitcnt lgkmcnt({3*(31-hd)})")
        b = 32 + 8*(hd % 4)
        C = "0" if hd == 0 else f"v[{ACC}:{ACC+15}]"
        e(f"v_mfma_f32_32x32x16_bf16 v[{ACC}:{ACC+15}], v[{b+4}:{b+7}], v[{b}:{b+3}], {C}")
    e.nop(14)
    for i in range(8): e(f"v_cvt_pk_bf16_f32 v{ACC+i}, v{ACC+2*i}, v{ACC+2*i+1}")
    for g in range(4): e(f"global_store_dwordx2 v10, v[{ACC+2*g}:{ACC+2*g+1}], s[6:7] offset:{16*g}")

def publish(e, items, vt):
    e(f"v_mov_b32 v{vt}, s{items[0]}")
    if len(items) > 1:
        e(f"v_mov_b32 v{vt+2}, s{items[1]}")
        e("v_cmp_eq_u32 vcc, 1, v2")
        e("s_nop 1")
        e(f"v_cndmask_b32 v{vt}, v{vt}, v{vt+2}, vcc")
    e(f"v_mov_b32 v{vt+1}, s60")
    e(f"s_mov_b64 exec, {(1 << len(items)) - 1}")
    e(f"global_store_dword v{vt}, v{vt+1}, s[62:63] sc1")
    e("s_mov_b64 exec, -1")

def gen():
    e = E()
    e("s_cmp_ge_u32 s2, 256")
    e("s_cbranch_scc1 KM_END")
    stamp(e, 0)
    e("s_load_dwordx2 s[62:63], s[0:1], 96")
    e("v_lshrrev_b32 v1, 6, v0")
    e("v_and_b32 v2, 63, v0")
    e("v_readfirstlane_b32 s24, v1")
    e("s_and_b32 s25, s2, 7")
    e("s_lshr_b32 s26, s2, 3")
    e(f"s_mov_b32 s61, {FE1}")
    e("s_cmp_ge_u32 s24, 8")
    e("s_cbranch_scc1 KM_B")
    params_load(e)
    e("s_cmp_ge_u32 s24, 4")
    e("s_cbranch_scc1 KM_A47")
    p1_compute(e)
    e("s_branch KM_A_P1E")
    e.label("KM_A47")
    e("s_cmp_lg_u32 s24, 5")
    e("s_cbranch_scc1 KM_NON_D")
    e("s_cmp_lg_u32 s2, 0")
    e("s_cbranch_scc1 KM_NON_D")
    e("s_load_dwordx2 s[50:51], s[0:1], 88")
    e("s_memrealtime s[52:53]")
    e("s_waitcnt lgkmcnt(0)")
    e("s_or_b32 s52, s52, 1")
    e("v_mov_b32 v6, s52")
    e("v_mov_b32 v7, 0")
    e("s_mov_b64 exec, 1")
    e("global_store_dword v7, v6, s[50:51] sc1")
    e("s_mov_b64 exec, -1")
    e.label("KM_NON_D")
    e("s_cmp_lg_u32 s24, 4")
    e("s_cbranch_scc1 KM_A567")
    e("v_lshlrev_b32 v6, 2, v2")
    e(f"v_add_u32 v6, {FLG}, v6")
    e("v_mov_b32 v7, 0")
    e("s_mov_b64 exec, 0xf7f")
    e("ds_write_b32 v6, v7")
    e("s_mov_b64 exec, -1")
    e("s_waitcnt lgkmcnt(0)")
    for i in range(NST+1): e("s_barrier")
    e("s_branch KM_A_P1E")
    e.label("KM_A567")
    for i in range(NST+1): e("s_barrier")
    e.label("KM_A_P1E")
    stamp(e, 5)
    kgen8(e)
    attn(e)
    e("s_lshl_b32 s36, s28, 3")
    e("s_lshl_b32 s37, s29, 1")
    e("s_add_u32 s36, s36, s37")
    e("s_add_u32 s36, s36, s30")
    e("s_lshl_b32 s36, s36, 5")
    e("s_add_u32 s36, s36, s27")
    e("s_lshl_b32 s36, s36, 2")
    e(f"s_add_u32 s36, s36, {FE4}")
    get_nonce(e, 6)
    e("s_waitcnt vmcnt(0)")
    pub1(e, 36, 6)
    stamp(e, 11)
    e("s_cmp_ge_u32 s24, 4")
    e("s_cbranch_scc1 KM_A47_P3")
    p3_compute(e)
    if PROF["on"]:
        e("s_waitcnt vmcnt(0)")
    stamp_flush(e, 0, 12)
    e("s_endpgm")
    e.label("KM_A47_P3")
    e("s_barrier")
    e("s_barrier")
    stamp_flush(e, 0, 12)
    e("s_endpgm")
    e.label("KM_B")
    p1_loader(e)
    stamp(e, 2)
    b_phase2(e)
    p3_loader(e)
    stamp_flush(e, 0, 12)
    e.label("KM_END")
    e("s_endpgm")
    return e.text()
```

```python
import sys
from asmlib import *
import gen_fused
HEADER = open("concat_heads__mha_block__ssm_conv_s4d__prompt.s.ref").read().split("; Override launch")[0]
NAME = "concat_heads__mha_block__ssm_conv_s4d__prompt_kernel"
def build():
    s = HEADER
    s += f"; @launch grid=(256,1,1) block=(768,1,1) lds={gen_fused.LDS_SIZE}\n"
    s += '.amdgcn_target "amdgcn-amd-amdhsa--gfx950"\n.text\n'
    s += khead(NAME) + gen_fused.gen()
    s += '.section .rodata,"a"\n' + kdesc(NAME, 168, 100 if PROF['on'] else 96)
    return s
if __name__ == "__main__":
    out = sys.argv[1]
    gen_fused.OPT.update({"touch": 0, "rot": 2})
    for a in sys.argv[2:]:
        if a == "prof": PROF["on"] = True
        else:
            k, v = a.split("="); gen_fused.OPT[k] = int(v)
    open(out, "w").write(build())
    print("written", out)
```

```python
from asmlib import *
QF=0; KF=0x200000; VF=0x400000; OW=0x600000; UT=0x800000; KT=0xA00000; YT=0xF00000; FL=0x1200000
KT_CH = 8448
FE1 = FL; FE2 = FL + 4096; FE3 = FL + 5120; FE4 = FL + 8192
NST=16; WR=8; XR=6; WSLOT=12288; XSLOT=8192; WBASE=XR*XSLOT
PITCH=528; KST=4352
UB=131072; STG=143360; QB=152064; EXB=143360; FLG=161792
LDS_SIZE = 163840
F_FALL, F_S1, F_S2, F_F1, F_ST, F_CV, F_F2, F_NON, F_U0, F_U1, F_M0, F_M1 = (FLG+4*i for i in range(12))
TB2 = 3
F_PR = FLG + 64
OPT = {}

def srd(e, d, lo, hi, size):
    e(f"s_mov_b32 s{d}, s{lo}")
    e(f"s_and_b32 s{d+1}, s{hi}, 0xffff")
    e(f"s_mov_b32 s{d+2}, {size}")
    e(f"s_mov_b32 s{d+3}, 0x20000")

def lds_inc(e, addr, vt):
    e("s_waitcnt lgkmcnt(0)")
    e(f"v_mov_b32 v{vt}, {addr}")
    e(f"v_mov_b32 v{vt+1}, 1")
    e("s_mov_b64 exec, 1")
    e(f"ds_add_u32 v{vt}, v{vt+1}")
    e("s_mov_b64 exec, -1")
def lds_wait(e, addr, target, vt, st, tag):
    e(f"v_mov_b32 v{vt}, {addr}")
    e(f"s_mov_b32 s{st+1}, 0x400000")
    e.label(f"LW_{tag}")
    e(f"ds_read_b32 v{vt+1}, v{vt}")
    e(f"s_sub_u32 s{st+1}, s{st+1}, 1")
    e("s_waitcnt lgkmcnt(0)")
    e(f"v_readfirstlane_b32 s{st}, v{vt+1}")
    e(f"s_cmp_eq_u32 s{st+1}, 0")
    e(f"s_cbranch_scc1 LWD_{tag}")
    e(f"s_cmp_ge_u32 s{st}, {target}")
    e(f"s_cbranch_scc1 LWD_{tag}")
    e("s_sleep 1")
    e(f"s_branch LW_{tag}")
    e.label(f"LWD_{tag}")
def gpoll(e, base_sgpr_expr, nl, vt, st, tag):
    e(f"v_and_b32 v{vt}, {nl-1}, v2")
    e(f"v_lshlrev_b32 v{vt}, 2, v{vt}")
    e(f"v_add_u32 v{vt}, s{st}, v{vt}")
    e(f"s_mov_b32 s{st+1}, 0x100000")
    e.label(f"GP_{tag}")
    e(f"global_load_dword v{vt+1}, v{vt}, s[62:63] sc1")
    e(f"s_sub_u32 s{st+1}, s{st+1}, 1")
    e("s_waitcnt vmcnt(0)")
    e(f"v_cmp_eq_u32 vcc, s60, v{vt+1}")
    e(f"s_cmp_eq_u32 s{st+1}, 0")
    e(f"s_cbranch_scc1 GPD_{tag}")
    e("s_cmp_eq_u64 vcc, exec")
    e(f"s_cbranch_scc0 GP_{tag}")
    e.label(f"GPD_{tag}")
def pub1(e, st, vt):
    e(f"v_mov_b32 v{vt}, s{st}")
    e(f"v_mov_b32 v{vt+1}, s60")
    e("s_mov_b64 exec, 1")
    e(f"global_store_dword v{vt}, v{vt+1}, s[62:63] sc1")
    e("s_mov_b64 exec, -1")
def lds_set(e, addr, vt):
    e(f"v_mov_b32 v{vt}, {addr}")
    e(f"v_mov_b32 v{vt+1}, 1")
    e("s_mov_b64 exec, 1")
    e(f"ds_write_b32 v{vt}, v{vt+1}")
    e("s_mov_b64 exec, -1")
def get_nonce(e, vt):
    e(f"v_mov_b32 v{vt}, {F_NON}")
    e(f"ds_read_b32 v{vt+1}, v{vt}")
    e("s_waitcnt lgkmcnt(0)")
    e(f"v_readfirstlane_b32 s60, v{vt+1}")
    e("s_nop 3")

def tile_ids(e):
    e("s_lshr_b32 s27, s25, 1")
    e("s_lshl_b32 s27, s27, 3")
    e("s_and_b32 s28, s26, 7")
    e("s_add_u32 s27, s27, s28")
    e("s_and_b32 s28, s25, 1")
    if OPT.get('hqmap', 0) == 0:
        e("s_lshl_b32 s28, s28, 2")
        e("s_lshr_b32 s29, s26, 3")
        e("s_add_u32 s28, s28, s29")
    else:
        e("s_lshr_b32 s29, s26, 3")
        e("s_lshl_b32 s29, s29, 1")
        e("s_add_u32 s28, s28, s29")

def p1_loader(e):
    e("s_load_dwordx4 s[4:7], s[0:1], 0")
    tile_ids(e)
    e("s_sub_u32 s30, s24, 8")
    e("v_lshrrev_b32 v3, 3, v2")
    e("v_lshlrev_b32 v3, 10, v3")
    e("v_lshrrev_b32 v4, 4, v2")
    e("v_and_b32 v5, 7, v2")
    e("v_xor_b32 v6, v5, v4")
    e("v_xor_b32 v7, 4, v6")
    e("v_lshl_add_u32 v8, v6, 4, v3")
    e("v_lshl_add_u32 v9, v7, 4, v3")
    e("s_lshl_b32 s31, s30, 14")
    e("s_lshl_b32 s34, s30, 11")
    e("s_mul_i32 s35, s30, 192")
    for ii in range(3):
        e(f"v_add_u32 v13, s35, v2")
        if ii: e(f"v_add_u32 v13, {64*ii}, v13")
        e("v_mul_u32_u24 v14, 683, v13")
        e("v_lshrrev_b32 v14, 14, v14")
        e("v_mul_u32_u24 v15, 24, v14")
        e("v_sub_u32 v15, v13, v15")
        e("v_lshrrev_b32 v16, 3, v15")
        e("v_and_b32 v15, 7, v15")
        e("v_bfe_u32 v17, v14, 1, 1")
        e("v_lshlrev_b32 v17, 2, v17")
        e("v_xor_b32 v15, v15, v17")
        e("v_mul_u32_u24 v14, 3072, v14")
        e("v_lshl_add_u32 v14, v16, 10, v14")
        e(f"v_lshl_add_u32 v{10+ii}, v15, 4, v14")
    e("s_mul_i32 s35, s30, 3072")
    e(f"s_add_u32 s35, s35, {WBASE}")
    e("s_lshl_b32 s29, s27, 16")
    e("s_lshl_b32 s33, s28, 7")
    e("s_waitcnt lgkmcnt(0)")
    e("s_add_u32 s4, s4, s29")
    e("s_addc_u32 s5, s5, 0")
    srd(e, 12, 4, 5, 65536)
    e("s_add_u32 s6, s6, s33")
    e("s_addc_u32 s7, s7, 0")
    e("s_mov_b32 s16, s6")
    e("s_and_b32 s17, s7, 0xffff")
    e("s_sub_u32 s18, 1572864, s33")
    e("s_mov_b32 s19, 0x20000")
    e("s_cmp_eq_u32 s30, 3")
    e("s_cbranch_scc0 P1L_NOUT")
    ut_task(e)
    e.label("P1L_NOUT")
    stamp(e, 1)
    order = []
    ROT = OPT.get('rot', 0)
    if ROT:
        if ROT == 1:
            e("s_lshr_b32 s20, s26, 3"); e("s_lshl_b32 s20, s20, 1")
        elif ROT == 2:
            e("s_and_b32 s20, s26, 7")
        else:
            e("s_lshr_b32 s20, s26, 3"); e("s_lshl_b32 s20, s20, 1"); e("s_and_b32 s21, s26, 1"); e("s_add_u32 s20, s20, s21")
    def dmaX(xs):
        if ROT:
            e(f"s_add_u32 s21, s20, {xs}")
            e("s_and_b32 s21, s21, 7")
            e("s_lshl_b32 s21, s21, 7")
            e("s_add_u32 s21, s21, s31")
        for ii in range(2):
            e(f"s_add_u32 m0, s34, {(xs % XR)*XSLOT + ii*1024}")
            if ROT: e(f"s_add_u32 s32, s21, {ii*8192}")
            else:   e(f"s_add_u32 s32, s31, {xs*128 + ii*8192}")
            e(f"buffer_load_dwordx4 v{8+ii}, s[12:15], s32 offen lds")
            order.append(('x', xs))
    def dmaW(st):
        if ROT:
            e("s_lshl_b32 s33, s20, 1")
            e(f"s_add_u32 s33, s33, {st}")
            e("s_and_b32 s33, s33, 15")
            e("s_mul_i32 s33, s33, 98304")
        else:
            e(f"s_mov_b32 s33, {st*98304}")
        for ii in range(3):
            e(f"s_add_u32 m0, s35, {(st % WR)*WSLOT + ii*1024}")
            e("s_nop 0")
            e(f"buffer_load_dwordx4 v{10+ii}, s[16:19], s33 offen lds")
            order.append(('w', st))
    nx = [0]; nw = [0]
    def issue_upto(wmax, xmax):
        wm = min(wmax, NST-1); xm = min(xmax, NST//2-1)
        while nw[0] <= wm or nx[0] <= xm:
            if nx[0] <= xm and (2*nx[0] <= nw[0] or nw[0] > wm):
                dmaX(nx[0]); nx[0] += 1
            else:
                dmaW(nw[0]); nw[0] += 1
    PRE = OPT.get('pre', 3)
    issue_upto(PRE-1, (PRE-1)//2)
    for k in range(NST):
        need = [i for i, o in enumerate(order) if o == ('w', k) or o == ('x', k//2)]
        n = len(order) - 1 - max(need)
        e(f"s_waitcnt vmcnt({n})")
        e("s_barrier")
        xfree = (k-2)//2 if k % 2 == 0 else (k-3)//2
        wlim = min(k - 1 + WR, nw[0] + OPT.get('ramp', 2) - 1)
        issue_upto(wlim, min(xfree + XR, (wlim+1)//2))
    e("s_barrier")

def params_load(e):
    e("s_load_dwordx4 s[4:7], s[0:1], 32")
    e("s_load_dwordx4 s[8:11], s[0:1], 48")
    e("s_load_dwordx2 s[12:13], s[0:1], 64")
    e("s_lshl_b32 s28, s25, 6")
    e("s_lshl_b32 s29, s26, 1")
    e("s_add_u32 s28, s28, s29")
    e("s_bfe_u32 s30, s24, 0x10001")
    e("s_and_b32 s31, s24, 1")
    e("s_add_u32 s32, s28, s30")
    e("s_lshl_b32 s33, s32, 7")
    e("s_lshl_b32 s34, s31, 6")
    e("s_add_u32 s33, s33, s34")
    e("v_add_u32 v3, s33, v2")
    e("v_lshlrev_b32 v3, 1, v3")
    e("s_lshl_b32 s33, s32, 1")
    e("v_mov_b32 v4, s33")
    e("s_waitcnt lgkmcnt(0)")
    e("global_load_ushort v160, v3, s[4:5]")
    e("global_load_ushort v161, v3, s[6:7]")
    e("global_load_ushort v162, v3, s[8:9]")
    e("global_load_ushort v163, v3, s[10:11]")
    e("global_load_ushort v164, v4, s[12:13]")

def p1_compute(e):
    e("s_load_dwordx2 s[50:51], s[0:1], 88")
    tile_ids(e)
    e("s_and_b32 s40, s24, 1")
    e("s_lshr_b32 s41, s24, 1")
    e("v_and_b32 v9, 31, v2")
    e("v_lshrrev_b32 v10, 5, v2")
    e("v_bfe_u32 v11, v9, 1, 3")
    e("v_xor_b32 v11, v11, v10")
    e("v_lshlrev_b32 v6, 7, v9")
    e("s_lshl_b32 s29, s40, 12")
    e("v_add_u32 v6, s29, v6")
    e("v_lshl_add_u32 v6, v11, 4, v6")
    e("v_xor_b32 v7, 32, v6")
    e("v_xor_b32 v15, 64, v6")
    e("v_xor_b32 v3, 96, v6")
    XA = [6, 7, 15, 3]
    e("v_bfe_u32 v11, v2, 2, 2")
    e("v_lshl_add_u32 v13, v10, 3, v11")
    e("v_mul_u32_u24 v8, 384, v13")
    e("v_bfe_u32 v11, v2, 3, 1")
    e("v_xor_b32 v11, s41, v11")
    e("v_lshl_add_u32 v8, v11, 6, v8")
    e("v_bfe_u32 v11, v2, 4, 1")
    e("v_lshl_add_u32 v8, v11, 5, v8")
    e("v_and_b32 v11, 3, v2")
    e("v_lshl_add_u32 v8, v11, 3, v8")
    e(f"v_add_u32 v8, {WBASE}, v8")
    e(f"v_add_u32 v4, {4*WSLOT}, v8")
    e("v_lshlrev_b32 v12, 4, v2")
    e("v_and_b32 v11, 19, v9")
    e("v_and_b32 v13, 4, v9")
    e("v_lshl_or_b32 v11, v13, 1, v11")
    e("v_and_b32 v13, 8, v9")
    e("v_lshrrev_b32 v13, 1, v13")
    e("v_or_b32 v11, v11, v13")
    e("v_lshl_add_u32 v11, v10, 5, v11")
    e("v_lshlrev_b32 v13, 4, v11")
    e("v_lshrrev_b32 v11, 4, v9")
    e("v_lshlrev_b32 v14, 16, v11")
    e("v_lshl_add_u32 v14, v10, 8, v14")
    e("v_and_b32 v11, 15, v9")
    e("v_lshl_add_u32 v14, v11, 4, v14")
    srd(e, 20, 62, 63, 0x600000)
    e("v_mov_b32 v5, 0")
    FR = [16, 48]; ACC = [80, 96, 112]
    def frag_reads(st):
        b = FR[st & 1]; L = []
        slot = st % WR
        va, so = (8, slot) if slot < 4 else (4, slot-4)
        for ks in range(2):
            L.append(f"ds_read_b128 v[{b+4*ks}:{b+4*ks+3}], v{XA[2*(st&1)+ks]} offset:{((st//2) % XR)*XSLOT}")
            for nt in range(3):
                r = b + 8 + (ks*3+nt)*4
                off = so*WSLOT + ks*16*384 + nt*128
                L.append(f"ds_read_b64_tr_b16 v[{r}:{r+1}], v{va} offset:{off}")
                L.append(f"ds_read_b64_tr_b16 v[{r+2}:{r+3}], v{va} offset:{off+4*384}")
        return L
    def mfmas(st):
        b = FR[st & 1]; L = []
        for ks in range(2):
            X = f"v[{b+4*ks}:{b+4*ks+3}]"
            for nt in range(3):
                r = b + 8 + (ks*3+nt)*4
                W = f"v[{r}:{r+3}]"
                a = ACC[nt]; A = f"v[{a}:{a+15}]"
                C = "0" if (st == 0 and ks == 0) else A
                if nt < 2: L.append(f"v_mfma_f32_32x32x16_bf16 {A}, {W}, {X}, {C}")
                else:      L.append(f"v_mfma_f32_32x32x16_bf16 {A}, {X}, {W}, {C}")
        return L
    stamp(e, 1)
    e("s_barrier")
    stamp(e, 2)
    for l in frag_reads(0): e(l)
    for st in range(NST):
        e(f"s_waitcnt lgkmcnt(0)")
        e("s_barrier")
        if st == 8:
            e("global_load_dword v159, v5, s[50:51] sc1")
        if st + 1 < NST:
            R = frag_reads(st + 1); M = mfmas(st)
            ri = 0
            for mi, m in enumerate(M):
                e(m)
                k = 3 if mi < 4 else 1
                for _ in range(k):
                    if ri < len(R): e(R[ri]); ri += 1
            while ri < len(R): e(R[ri]); ri += 1
        else:
            for m in mfmas(st): e(m)
    stamp(e, 3)
    e.nop(14)
    e("s_mov_b32 s33, 0x3eb8aa3b")
    e("s_lshl_b32 s36, s28, 2")
    e("s_lshl_b32 s37, s41, 1")
    e("s_add_u32 s36, s36, s37")
    e("s_lshl_b32 s36, s36, 6")
    e("s_lshl_b32 s37, s27, 1")
    e("s_add_u32 s36, s36, s37")
    e("s_add_u32 s36, s36, s40")
    e("s_lshl_b32 s36, s36, 10")
    P = 16
    for nt in (1, 2, 0):
        a = ACC[nt]
        if nt == 0:
            for i in range(16): e(f"v_mul_f32 v{a+i}, s33, v{a+i}")
        for i in range(8): e(f"v_cvt_pk_bf16_f32 v{P+8*nt+i}, v{a+2*i}, v{a+2*i+1}")
        base = (QF, KF, VF)[nt]; second = (65536, 65536, 512)[nt]; va = (12, 13, 14)[nt]
        e(f"s_add_u32 s37, s36, {base}")
        e(f"buffer_store_dwordx4 v[{P+8*nt}:{P+8*nt+3}], v{va}, s[20:23], s37 offen sc1")
        e(f"s_add_u32 s38, s36, {base+second}")
        e(f"buffer_store_dwordx4 v[{P+8*nt+4}:{P+8*nt+7}], v{va}, s[20:23], s38 offen sc1")
    e("s_waitcnt vmcnt(6)")
    e("s_mov_b32 s39, 0x100000")
    e.label("P1C_NON")
    e("v_readfirstlane_b32 s60, v159")
    e("s_sub_u32 s39, s39, 1")
    e("s_cmp_lg_u32 s60, 0")
    e("s_cbranch_scc1 P1C_NOND")
    e("s_cmp_eq_u32 s39, 0")
    e("s_cbranch_scc1 P1C_NOND")
    e("global_load_dword v159, v5, s[50:51] sc1")
    e("s_waitcnt vmcnt(0)")
    e("s_branch P1C_NON")
    e.label("P1C_NOND")
    e("s_lshl_b32 s36, s28, 1")
    e("s_add_u32 s36, s36, s41")
    e("s_lshl_b32 s36, s36, 6")
    e("s_lshl_b32 s37, s27, 1")
    e("s_add_u32 s36, s36, s37")
    e("s_add_u32 s36, s36, s40")
    e("s_lshl_b32 s36, s36, 2")
    e(f"s_add_u32 s61, s36, {FE1}")
    e("s_cmp_lg_u32 s24, 0")
    e("s_cbranch_scc1 P1C_NONON")
    e(f"v_mov_b32 v6, {F_NON}")
    e("v_mov_b32 v7, s60")
    e("ds_write_b32 v6, v7")
    e.label("P1C_NONON")

UTB = 22528
def ut_task(e):
    e("s_load_dwordx2 s[42:43], s[0:1], 24")
    e("s_and_b32 s36, s26, 3")
    e("s_lshr_b32 s37, s26, 2")
    e("v_and_b32 v60, 7, v2")
    e("v_lshrrev_b32 v61, 3, v2")
    e("s_lshl_b32 s38, s37, 8")
    e("s_lshl_b32 s39, s36, 3")
    e("s_add_u32 s38, s38, s39")
    e("v_lshlrev_b32 v62, 5, v61")
    e("v_add_u32 v62, s38, v62")
    e("v_lshlrev_b32 v62, 10, v62")
    e("s_lshl_b32 s38, s25, 7")
    e("v_lshl_add_u32 v62, v60, 4, v62")
    e("v_add_u32 v62, s38, v62")
    e("v_add_u32 v63, 0x1000, v62")
    e("s_lshl_b32 s38, s25, 18")
    e("s_lshl_b32 s39, s36, 10")
    e("s_add_u32 s38, s38, s39")
    e("s_lshl_b32 s39, s37, 7")
    e("s_add_u32 s38, s38, s39")
    e(f"s_add_u32 s38, s38, {UT}")
    e("v_lshlrev_b32 v56, 15, v61")
    e("v_lshl_add_u32 v56, v60, 4, v56")
    e("v_add_u32 v56, s38, v56")
    e("v_lshlrev_b32 v57, 7, v60")
    e("v_lshl_add_u32 v57, v61, 4, v57")
    e(f"v_add_u32 v57, {UTB}, v57")
    e("v_lshlrev_b32 v58, 4, v2")
    e(f"v_add_u32 v58, {UTB}, v58")
    e("s_waitcnt lgkmcnt(0)")
    for t in range(8):
        if t < 4: e(f"global_load_dwordx4 v[{96+4*t}:{99+4*t}], v62, s[42:43] offset:{1024*t}")
        else:     e(f"global_load_dwordx4 v[{96+4*t}:{99+4*t}], v63, s[42:43] offset:{1024*(t-4)}")
    e("s_mov_b32 s40, 0x05040100")
    e("s_mov_b32 s41, 0x07060302")

def ut_finish_a(e):
    e("s_waitcnt vmcnt(0)")
    for k in range(8):
        sel = "s40" if k % 2 == 0 else "s41"
        o = 64 + 4*(k % 4)
        for j in range(4):
            lo = 96 + 4*(7-2*j) + (k >> 1)
            hi = 96 + 4*(6-2*j) + (k >> 1)
            e(f"v_perm_b32 v{o+j}, v{hi}, v{lo}, {sel}")
        e(f"ds_write_b128 v57, v[{o}:{o+3}] offset:{1024*k}")
def ut_finish_b(e):
    e("s_waitcnt lgkmcnt(0)")
    for k in range(8): e(f"ds_read_b128 v[{96+4*k}:{99+4*k}], v58 offset:{1024*k}")
    for k in range(8):
        e(f"s_waitcnt lgkmcnt({7-k})")
        e(f"global_store_dwordx4 v56, v[{96+4*k}:{99+4*k}], s[62:63] sc1")
        if k < 7: e("v_add_u32 v56, 0x1000, v56")

def touches(e):
    which = OPT.get('touch', 7)
    if which == 0: return
    e("s_load_dwordx4 s[4:7], s[0:1], 0")
    e("s_lshl_b32 s30, s26, 6")
    e("v_add_u32 v16, s30, v2")
    e("s_mov_b32 s31, 43691")
    regs = {}
    for i in range(3):
        e(f"v_add_u32 v17, {i*2048}, v16")
        e("v_mul_lo_u32 v18, v17, s31")
        e("v_lshrrev_b32 v18, 19, v18")
        e("v_mul_u32_u24 v19, 12, v18")
        e("v_sub_u32 v19, v17, v19")
        e("v_mul_u32_u24 v18, 3072, v18")
        e("v_lshrrev_b32 v20, 2, v19")
        e("v_lshl_add_u32 v18, v20, 10, v18")
        e("v_and_b32 v19, 3, v19")
        e("v_lshl_add_u32 v18, v19, 7, v18")
        e("s_and_b32 s30, s25, 1")
        e("s_lshl_b32 s30, s30, 9")
        e(f"v_add_u32 v{24+i}, s30, v18")
    for i in range(2):
        e(f"v_add_u32 v17, {i*2048}, v16")
        e("v_lshrrev_b32 v18, 9, v17")
        e("v_and_b32 v19, 511, v17")
        e("v_lshlrev_b32 v19, 10, v19")
        e("v_lshl_add_u32 v19, v18, 7, v19")
        e("s_lshr_b32 s30, s25, 1")
        e("s_lshl_b32 s30, s30, 19")
        e(f"v_add_u32 v{28+i}, s30, v19")
    e("s_waitcnt lgkmcnt(0)")
    seq = [("W",24),("X",28),("W",25),("X",29),("W",26)]
    for b, (t, r) in enumerate(seq):
        if which >> b & 1:
            e(f"global_load_dword v{150+b}, v{r}, {'s[6:7]' if t=='W' else 's[4:5]'}")

def kgen8(e):
    e("s_lshl_b32 s28, s25, 6")
    e("s_lshl_b32 s29, s26, 1")
    e("s_add_u32 s28, s28, s29")
    e("s_bfe_u32 s30, s24, 0x10001")
    e("s_and_b32 s31, s24, 1")
    e("s_lshr_b32 s35, s24, 2")
    e("s_add_u32 s32, s28, s30")
    LOG2E="0x3fb8aa3b"; INV2PI="0x3e22f983"
    e("s_cmp_lt_u32 s24, 4")
    e("s_cbranch_scc1 KG_PW")
    e("s_waitcnt vmcnt(0)")
    e("s_branch KG_PD")
    e.label("KG_PW")
    e("s_waitcnt vmcnt(7)")
    e.label("KG_PD")
    e("v_lshlrev_b32 v10, 16, v160")
    e("v_lshlrev_b32 v11, 16, v161")
    e("v_lshlrev_b32 v12, 16, v162")
    e("v_lshlrev_b32 v13, 16, v163")
    e("v_lshlrev_b32 v14, 16, v164")
    e(f"v_mul_f32 v14, {LOG2E}, v14")
    e(f"v_mul_f32 v10, {LOG2E}, v10")
    e("v_exp_f32 v14, v14")
    e("v_exp_f32 v10, v10")
    e("s_nop 0")
    e("v_cvt_pk_bf16_f32 v14, v14, v14")
    e("v_cvt_pk_bf16_f32 v10, v10, v10")
    e("v_lshlrev_b32 v14, 16, v14")
    e("v_lshlrev_b32 v10, 16, v10")
    e("v_mul_f32 v10, v10, v14")
    e("v_mul_f32 v11, v11, v14")
    e(f"v_mul_f32 v10, 0xbfb8aa3b, v10")
    e(f"v_mul_f32 v11, {INV2PI}, v11")
    e("s_lshl_b32 s36, s30, 16")
    e("s_add_u32 s36, s36, 5120")
    e("s_add_u32 s37, s36, 32768")
    e("s_lshl_b32 s38, s31, 8")
    e("v_lshlrev_b32 v15, 2, v2")
    e("v_add_u32 v15, s38, v15")
    def cexp(d, mult, t0, t1):
        if mult is None:
            e(f"v_exp_f32 v{t0}, v10"); e(f"v_fract_f32 v{t1}, v11")
        else:
            e(f"v_mul_f32 v{t0}, {mult}, v10"); e(f"v_mul_f32 v{t1}, {mult}, v11")
            e(f"v_exp_f32 v{t0}, v{t0}"); e(f"v_fract_f32 v{t1}, v{t1}")
        e("s_nop 0")
        e(f"v_cos_f32 v{d}, v{t1}"); e(f"v_sin_f32 v{d+1}, v{t1}")
        e("s_nop 0")
        e(f"v_mul_f32 v{d}, v{d}, v{t0}"); e(f"v_mul_f32 v{d+1}, v{d+1}, v{t0}")
    def cm1(d,z,w): e(f"v_pk_mul_f32 v[{d}:{d+1}], v[{z}:{z+1}], v[{w}:{w+1}] op_sel:[0,0] op_sel_hi:[0,1]")
    def cm2(d,z,w): e(f"v_pk_fma_f32 v[{d}:{d+1}], v[{z}:{z+1}], v[{w}:{w+1}], v[{d}:{d+1}] op_sel:[1,1,0] op_sel_hi:[1,0,1] neg_lo:[1,0,0]")
    def tmp(row): return 60 + (row % 8)
    def wr(row, z, neg):
        e(f"v_cvt_pk_bf16_f32 v{tmp(row)}, v{z}, {'-' if neg else ''}v{z+1}")
        e(f"ds_write_b32 v15, v{tmp(row)} offset:{row*PITCH}")
    def chains(cur, step, nrows, neg, saved):
        alt = [c+16 for c in cur]
        pend = [(r, cur[r]) for r in range(4)]
        row = 4
        while row < nrows:
            n = min(4, nrows-row)
            dst = []
            for i in range(n):
                d = saved.get(row+i, alt[i])
                dst.append(d)
            for i in range(n): cm1(dst[i], cur[i], step)
            for (r, z) in pend: wr(r, z, neg)
            for i in range(n): cm2(dst[i], cur[i], step)
            pend = [(row+i, dst[i]) for i in range(n)]
            newcur = list(cur); newalt = list(alt)
            for i in range(n):
                if dst[i] == alt[i]: newalt[i] = cur[i]
                newcur[i] = dst[i]
            cur, alt = newcur, [a if a not in saved.values() else None for a in newalt]
            for i in range(4):
                if alt[i] is None: alt[i] = 44 + 2*i if (44+2*i) != cur[i] else 28 + 2*i
            row += n
        for (r, z) in pend: wr(r, z, neg)
    e("s_cmp_eq_u32 s35, 0")
    e("s_cbranch_scc0 KG_XP")
    e("v_add_u32 v15, s37, v15")
    W1, W2, W4, W1K = 16, 18, 20, 22
    cexp(W1, None, 4, 5)
    cexp(W1K, "0x44800000", 6, 7)
    cm1(W2, W1, W1); cm2(W2, W1, W1)
    e("v_mov_b32 v28, 1.0"); e("v_mov_b32 v29, 0")
    e(f"v_mov_b32 v30, v{W1}"); e(f"v_mov_b32 v31, v{W1+1}")
    e(f"v_mov_b32 v32, v{W2}"); e(f"v_mov_b32 v33, v{W2+1}")
    cm1(34, W2, W1); cm1(W4, W2, W2); cm2(34, W2, W1); cm2(W4, W2, W2)
    saved = {8:70, 16:72, 24:74, 32:76}
    chains([28,30,32,34], W4, 33, True, saved)
    cm1(52, 70, W1K); cm1(54, 72, W1K); cm1(56, 74, W1K); cm1(58, 76, W1K)
    wr(33, W1K, True)
    cm2(52, 70, W1K); cm2(54, 72, W1K); cm2(56, 74, W1K); cm2(58, 76, W1K)
    wr(34, 52, True); wr(35, 54, True); wr(36, 56, True); wr(37, 58, True)
    e("s_branch KG_TD")
    e.label("KG_XP")
    e("v_add_u32 v15, s36, v15")
    e("v_lshlrev_b32 v12, 16, v162")
    e("v_mul_f32 v12, v12, v14")
    e("v_mul_f32 v13, v13, v14")
    e("v_add_f32 v28, v12, v12")
    e("v_add_f32 v29, v13, v13")
    W32, W64, W128 = 16, 18, 20
    cexp(W32, "0x42000000", 4, 5)
    cm1(W64, W32, W32); cm1(30, 28, W32); cm2(W64, W32, W32); cm2(30, 28, W32)
    cm1(32, 28, W64); cm1(34, 30, W64); cm1(W128, W64, W64)
    cm2(32, 28, W64); cm2(34, 30, W64); cm2(W128, W64, W64)
    chains([28,30,32,34], W128, 32, False, {})
    e.label("KG_TD")
    e("s_lshl_b32 s39, s35, 1")
    e("s_add_u32 s39, s39, s31")
    e("v_and_b32 v5, 31, v2")
    e("v_lshrrev_b32 v6, 5, v2")
    e("v_lshlrev_b32 v7, 4, v6")
    e(f"v_mul_u32_u24 v8, {PITCH}, v5")
    e("v_add_u32 v16, v7, v8")
    e("v_add_u32 v16, s36, v16")
    e("v_cvt_f32_u32 v9, v5")
    e("s_mov_b32 s40, 0")
    e("s_cmp_eq_u32 s39, 1"); e("s_cselect_b32 s40, 0x43800000, s40")
    e("s_cmp_eq_u32 s39, 2"); e("s_cselect_b32 s40, 0x44000000, s40")
    e("s_cmp_eq_u32 s39, 3"); e("s_cselect_b32 s40, 0x44800000, s40")
    e("v_add_f32 v17, s40, v9")
    e("v_cvt_pk_bf16_f32 v17, v17, v17")
    e("v_lshlrev_b32 v17, 16, v17")
    e("v_subrev_f32 v17, s40, v17")
    e("v_cvt_u32_f32 v17, v17")
    e("v_lshrrev_b32 v18, 3, v17")
    e("v_add_u32 v18, 33, v18")
    e("s_cmp_eq_u32 s39, 3")
    e("s_cselect_b64 vcc, -1, 0")
    e("v_cndmask_b32 v17, v17, v18, vcc")
    e(f"v_mul_u32_u24 v17, {PITCH}, v17")
    e("v_add_u32 v17, v7, v17")
    e("v_add_u32 v17, s37, v17")
    stamp(e, 6)
    lds_inc(e, F_S1, 18)
    lds_wait(e, F_S1, 8, 18, 41, "S1")
    stamp(e, 7)
    def rd(ks):
        b = 20 + 8*(ks % 4)
        e(f"ds_read_b128 v[{b}:{b+3}], v16 offset:{32*ks}")
        e(f"ds_read_b128 v[{b+4}:{b+7}], v17 offset:{32*ks}")
    rd(0); rd(1); rd(2)
    for ks in range(16):
        if ks + 3 < 16:
            rd(ks+3); e("s_waitcnt lgkmcnt(6)")
        else: e(f"s_waitcnt lgkmcnt({2*(15-ks)})")
        b = 20 + 8*(ks % 4)
        C = "0" if ks == 0 else "v[64:79]"
        e(f"v_mfma_f32_32x32x16_bf16 v[64:79], v[{b+4}:{b+7}], v[{b}:{b+3}], {C}")
    e("s_cmp_ge_u32 s24, 4")
    e("s_cbranch_scc1 KG_NOST")
    e("s_waitcnt vmcnt(0)")
    pub1(e, 61, 18)
    lds_inc(e, F_ST, 18)
    e.label("KG_NOST")
    stamp(e, 4)
    e(f"s_mul_i32 s36, s30, {KST}")
    e(f"s_add_u32 s36, s36, {STG}")
    e("v_lshlrev_b32 v7, 6, v5")
    e("v_lshl_add_u32 v7, v6, 3, v7")
    e("v_add_u32 v7, s36, v7")
    e("v_add_u32 v7, 64, v7")
    e("s_mov_b32 s40, 0xff")
    e("s_cmp_eq_u32 s39, 1"); e("s_cselect_b32 s40, 0xff00, s40")
    e("s_cmp_eq_u32 s39, 2"); e("s_cselect_b32 s40, 0xffff0000, s40")
    e("s_cmp_eq_u32 s39, 3"); e("s_cselect_b32 s40, -1, s40")
    e("s_cselect_b32 s42, 2048, 0")
    e("s_mov_b32 s41, s40")
    e("v_add_u32 v7, s42, v7")
    e("v_mov_b32 v20, 0")
    e("v_lshlrev_b32 v21, 2, v2")
    e("v_add_u32 v21, s36, v21")
    e.nop(6)
    for i in range(8): e(f"v_cvt_pk_bf16_f32 v{64+i}, v{64+2*i}, v{65+2*i}")
    e("s_mov_b64 exec, s[40:41]")
    for g in range(4): e(f"ds_write_b64 v7, v[{64+2*g}:{65+2*g}] offset:{16*g}")
    e("s_cmp_lg_u32 s39, 0")
    e("s_cbranch_scc1 KG_NP")
    e("s_mov_b64 exec, 0xffff")
    e("ds_write_b32 v21, v20")
    e("s_mov_b32 s40, -1")
    e("s_mov_b32 s41, 0xffff")
    e("s_mov_b64 exec, s[40:41]")
    e("ds_write_b32 v21, v20 offset:4160")
    e.label("KG_NP")
    e("s_mov_b64 exec, -1")
    lds_inc(e, F_S2, 18)
    lds_wait(e, F_S2, 8, 18, 41, "S2")
    e("s_lshl_b32 s37, s39, 6")
    e("v_add_u32 v5, s37, v2")
    e("v_lshlrev_b32 v6, 4, v5")
    e("v_add_u32 v7, s36, v6")
    e(f"s_mul_i32 s38, s32, {KT_CH}")
    e(f"s_add_u32 s38, s38, {KT}")
    e("s_add_u32 s18, s62, s38")
    e("s_addc_u32 s19, s63, 0")
    e("v_add_u32 v8, 0x1000, v6")
    e("v_add_u32 v30, 4224, v6")
    e(f"v_add_u32 v42, {4224+4096}, v6")
    e(f"ds_read_b128 v[20:23], v7")
    e(f"ds_read_b32 v24, v7 offset:16")
    e(f"ds_read_b128 v[32:35], v7 offset:4096")
    e(f"ds_read_b32 v36, v7 offset:4112")
    e("s_waitcnt lgkmcnt(0)")
    for i in range(4): e(f"v_alignbit_b32 v{26+i}, v{21+i}, v{20+i}, 16")
    KSC = " sc1" if OPT.get('ksc', 0) else ""
    e(f"global_store_dwordx4 v6, v[20:23], s[18:19]{KSC}")
    e(f"global_store_dwordx4 v30, v[26:29], s[18:19]{KSC}")
    e("v_cmp_gt_u32 vcc, 8, v5")
    e("s_and_saveexec_b64 s[40:41], vcc")
    e("s_cbranch_execz KG_RB_SKIP")
    for i in range(4): e(f"v_alignbit_b32 v{38+i}, v{33+i}, v{32+i}, 16")
    e(f"global_store_dwordx4 v8, v[32:35], s[18:19]{KSC}")
    e(f"global_store_dwordx4 v42, v[38:41], s[18:19]{KSC}")
    e.label("KG_RB_SKIP")
    e("s_mov_b64 exec, -1")

S = [[16,32],[48,64]]; O = [80,96]; Q = [112,116]; KR = [120,124]; VR = [[128,132],[136,140]]
IDX = 144; VK, VV = 145, 146; T0 = 148

def attn(e):
    e("s_lshl_b32 s27, s25, 2")
    e("s_and_b32 s28, s26, 3")
    e("s_add_u32 s27, s27, s28")
    e("s_lshr_b32 s28, s26, 2")
    e("s_and_b32 s29, s24, 3")
    e("s_lshr_b32 s30, s24, 2")
    e("v_lshlrev_b32 v3, 4, v2")
    srd(e, 12, 62, 63, 0x800000)
    e("s_lshl_b32 s34, s30, 16")
    e(f"v_add_u32 v{VK}, s34, v3")
    e("v_and_b32 v4, 15, v2")
    e("v_lshrrev_b32 v5, 5, v2")
    e("v_lshlrev_b32 v4, 4, v4")
    e("v_lshl_add_u32 v4, v5, 8, v4")
    e(f"v_add_u32 v{VV}, s34, v4")
    e(f"v_mov_b32 v{IDX}, 0xdddd")
    e("v_and_b32 v4, 31, v2")
    e("v_cmp_eq_u32 vcc, 16, v4")
    e("v_cmp_eq_u32 s[44:45], 20, v4")
    e("s_nop 1")
    e("s_or_b64 vcc, vcc, s[44:45]")
    e("v_mov_b32 v5, 0x3f803f80")
    e("v_mov_b32 v6, 0")
    e("s_nop 1")
    e("v_cndmask_b32 v6, v6, v5, vcc")
    for b in range(2):
        for hf in range(2):
            for i in range(4): e(f"v_mov_b32 v{VR[b][hf]+i}, v6")
    e("s_mov_b32 s46, 0xffff")
    e("s_mov_b32 s47, 0xffff")
    for t in range(2):
        for i in range(16): e(f"v_mov_b32 v{O[t]+i}, 0")
    e("s_lshl_b32 s35, s29, 11")
    e(f"s_add_u32 s35, s35, {QB}")
    e("v_add_u32 v4, s35, v3")
    def ldK(t):  return f"ds_read_b128 v[{KR[t&1]}:{KR[t&1]+3}], v{VK} offset:{t*1024}"
    def ldV(t):
        b = t & 1
        return ["s_mov_b64 exec, s[46:47]",
                f"ds_read_b128 v[{VR[b][0]}:{VR[b][0]+3}], v{VV} offset:{32768+t*1024}",
                f"ds_read_b128 v[{VR[b][1]}:{VR[b][1]+3}], v{VV} offset:{32768+t*1024+512}",
                "s_mov_b64 exec, -1"]
    def qk(t, tile):
        s = S[t&1][tile]
        return f"v_mfma_f32_32x32x16_bf16 v[{s}:{s+15}], v[{KR[t&1]}:{KR[t&1]+3}], v[{Q[tile]}:{Q[tile]+3}], 0"
    def pv(t, tile, hf):
        s = S[t&1][tile] + 8*hf; v = VR[t&1][hf]; o = O[tile]
        return f"v_smfmac_f32_32x32x32_bf16 v[{o}:{o+15}], v[{v}:{v+3}], v[{s}:{s+7}], v{IDX}"
    stamp(e, 8)
    e("s_barrier")
    stamp(e, 9)
    e(f"ds_read_b128 v[{Q[0]}:{Q[0]+3}], v4")
    e(f"ds_read_b128 v[{Q[1]}:{Q[1]+3}], v4 offset:1024")
    e(ldK(0)); e(ldK(1))
    for l in ldV(0): e(l)
    e("s_lshl_b32 s57, s24, 2")
    e(f"s_add_u32 s57, s57, {F_PR}")
    e(f"v_mov_b32 v{T0+2}, s57")
    e(f"s_xor_b32 s57, s57, 16")
    e(f"v_mov_b32 v{T0+3}, s57")
    e(f"s_setprio {OPT.get('lop', 1)}")
    e("s_waitcnt lgkmcnt(0)")
    e(qk(0,0)); e(qk(0,1))
    e.nop(10)
    NT = 32
    for t in range(NT):
        sa, sb = S[t&1]
        ex = lambda r: e(f"v_exp_f32 v{r}, v{r}")
        if t == TB2:
            e("s_waitcnt vmcnt(0)")
            e("s_barrier")
        DP = OPT.get('dyn', 4)
        e("s_waitcnt lgkmcnt(0)")
        if DP and t >= DP and t % DP == 0 and t < NT - 2:
            e(f"v_readfirstlane_b32 s57, v{T0+1}")
            e(f"s_cmp_gt_u32 s57, {t-1}")
            e(f"s_setprio {OPT.get('hip', 2)}")
            e(f"s_cbranch_scc1 AT_PF{t}")
            e(f"s_setprio {OPT.get('lop', 1)}")
            e.label(f"AT_PF{t}")
        if t+1 < NT: e(qk(t+1, 0))
        if DP and t % DP == DP - 1 and t < NT - 3:
            e(f"v_mov_b32 v{T0}, {t+1}")
            e(f"ds_write_b32 v{T0+2}, v{T0}")
            e(f"ds_read_b32 v{T0+1}, v{T0+3}")
        for i in range(0,4): ex(sa+i)
        if t > 0: e(pv(t-1, 1, 1))
        if t+2 < NT: e(ldK(t+2))
        if t+1 < NT:
            for l in ldV(t+1): e(l)
        for i in range(4,9): ex(sa+i)
        if t+1 < NT: e(qk(t+1, 1))
        for i in range(9,14): ex(sa+i)
        e(pv(t, 0, 0))
        for i in range(14,16): ex(sa+i)
        for i in range(0,3): ex(sb+i)
        e(pv(t, 0, 1))
        for i in range(3,10): ex(sb+i)
        e(pv(t, 1, 0))
        for i in range(10,16): ex(sb+i)
    e("s_nop 1")
    e(pv(NT-1, 1, 1))
    e("s_setprio 0")
    stamp(e, 10)
    e.nop(14)
    finalize(e, True)
    e("s_branch AT_DONE")
    e.label("AT_FALLBACK")
    fallback(e)
    finalize(e, False)
    e.label("AT_DONE")

def finalize(e, check):
    sfx = "C" if check else "F"
    if check:
        e(f"v_mov_b32 v{T0}, 0")
        for t in range(2):
            for i in range(8): e(f"v_fma_f32 v{T0}, v{O[t]+i}, 0, v{T0}")
        e("s_mov_b32 s48, 0x21800000")
        e("s_mov_b32 s49, 0x5d800000")
        e(f"v_cmp_u_f32 vcc, v{T0}, v{T0}")
        for t in range(2):
            e(f"v_cmp_nle_f32 s[50:51], s48, v{O[t]+8}")
            e(f"v_cmp_nge_f32 s[58:59], s49, v{O[t]+8}")
            e("s_nop 1")
            e("s_or_b64 vcc, vcc, s[50:51]")
            e("s_or_b64 vcc, vcc, s[58:59]")
        e("s_cmp_eq_u64 vcc, 0")
        e(f"s_cbranch_scc1 AT_OK{sfx}")
        e("v_mov_b32 v4, 1")
        e(f"v_mov_b32 v5, {F_FALL}")
        e("ds_write_b32 v5, v4")
        e.label(f"AT_OK{sfx}")
    else:
        e("s_barrier")
    e("s_mul_i32 s52, s24, 2304")
    e(f"s_add_u32 s52, s52, {EXB}")
    e("v_lshlrev_b32 v4, 4, v2")
    e("v_add_u32 v4, s52, v4")
    e("v_lshlrev_b32 v5, 2, v2")
    e("v_add_u32 v5, s52, v5")
    if check:
        e("s_waitcnt lgkmcnt(0)")
        e("s_barrier")
    e("s_cmp_eq_u32 s30, 0")
    e(f"s_cbranch_scc1 AT_SB{sfx}")
    e(f"ds_write_b128 v4, v[{O[0]}:{O[0]+3}]")
    e(f"ds_write_b128 v4, v[{O[0]+4}:{O[0]+7}] offset:1024")
    e(f"ds_write_b32 v5, v{O[0]+8} offset:2048")
    e("s_nop 1")
    for i in range(9): e(f"v_mov_b32 v{O[0]+i}, v{O[1]+i}")
    e(f"s_branch AT_SD{sfx}")
    e.label(f"AT_SB{sfx}")
    e(f"ds_write_b128 v4, v[{O[1]}:{O[1]+3}]")
    e(f"ds_write_b128 v4, v[{O[1]+4}:{O[1]+7}] offset:1024")
    e(f"ds_write_b32 v5, v{O[1]+8} offset:2048")
    e.label(f"AT_SD{sfx}")
    e("s_waitcnt lgkmcnt(0)")
    e("s_barrier")
    e("s_xor_b32 s53, s24, 4")
    e("s_mul_i32 s53, s53, 2304")
    e(f"s_add_u32 s53, s53, {EXB}")
    e("v_lshlrev_b32 v4, 4, v2")
    e("v_add_u32 v4, s53, v4")
    e("v_lshlrev_b32 v5, 2, v2")
    e("v_add_u32 v5, s53, v5")
    e(f"ds_read_b128 v[{T0}:{T0+3}], v4")
    e(f"ds_read_b128 v[{T0+4}:{T0+7}], v4 offset:1024")
    e(f"ds_read_b32 v{T0+8}, v5 offset:2048")
    if check:
        e(f"v_mov_b32 v6, {F_FALL}")
        e(f"ds_read_b32 v7, v6")
    e("s_waitcnt lgkmcnt(0)")
    if check:
        e("v_readfirstlane_b32 s54, v7")
        e("s_nop 3")
        e("s_cmp_lg_u32 s54, 0")
        e("s_cbranch_scc1 AT_FALLBACK")
    for i in range(9): e(f"v_add_f32 v{O[0]+i}, v{O[0]+i}, v{T0+i}")
    e(f"v_rcp_f32 v{T0}, v{O[0]+8}")
    e("s_nop 0")
    for i in range(8): e(f"v_mul_f32 v{O[0]+i}, v{O[0]+i}, v{T0}")
    for i in range(4): e(f"v_cvt_pk_bf16_f32 v{T0+4+i}, v{O[0]+2*i}, v{O[0]+2*i+1}")
    e("s_lshl_b32 s55, s28, 3")
    e("s_lshl_b32 s56, s29, 1")
    e("s_add_u32 s55, s55, s56")
    e("s_add_u32 s55, s55, s30")
    e("s_lshl_b32 s55, s55, 5")
    e("s_add_u32 s55, s55, s27")
    e("s_lshl_b32 s55, s55, 10")
    e(f"s_add_u32 s55, s55, {OW}")
    e(f"buffer_store_dwordx4 v[{T0+4}:{T0+7}], v3, s[12:15], s55 offen sc1")

def fallback(e):
    M = [T0+10, T0+11]
    e(f"v_mov_b32 v{M[0]}, 0xff800000")
    e(f"v_mov_b32 v{M[1]}, 0xff800000")
    e("v_lshlrev_b32 v4, 4, v2")
    e("s_mov_b32 s57, 0")
    e.label("FB_MAX")
    e(f"ds_read_b128 v[{KR[0]}:{KR[0]+3}], v4")
    e("s_waitcnt lgkmcnt(0)")
    for t in range(2):
        s = S[0][t]
        e(f"v_mfma_f32_32x32x16_bf16 v[{s}:{s+15}], v[{KR[0]}:{KR[0]+3}], v[{Q[t]}:{Q[t]+3}], 0")
    e.nop(16)
    for t in range(2):
        s = S[0][t]
        for i in range(0,16,2): e(f"v_max3_f32 v{M[t]}, v{s+i}, v{s+i+1}, v{M[t]}")
    e("s_add_u32 s57, s57, 1")
    e("s_cmp_eq_u32 s57, 32")
    e("s_movk_i32 s58, 1024")
    e("s_cselect_b32 s58, 33792, s58")
    e("v_add_u32 v4, s58, v4")
    e("s_cmp_lt_u32 s57, 64")
    e("s_cbranch_scc1 FB_MAX")
    for t in range(2):
        e(f"v_mov_b32 v5, v{M[t]}")
        e("s_nop 1")
        e(f"v_permlane32_swap_b32 v{M[t]}, v5")
        e("s_nop 1")
        e(f"v_max_f32 v{M[t]}, v{M[t]}, v5")
        for i in range(16): e(f"v_sub_f32 v{S[1][t]+i}, 0, v{M[t]}")
    for t in range(2):
        for i in range(16): e(f"v_mov_b32 v{O[t]+i}, 0")
    e(f"v_mov_b32 v4, v{VK}")
    e(f"v_mov_b32 v5, v{VV}")
    e("s_mov_b32 s57, 0")
    e.label("FB_MAIN")
    e(f"ds_read_b128 v[{KR[0]}:{KR[0]+3}], v4")
    e("s_mov_b64 exec, s[46:47]")
    e(f"ds_read_b128 v[{VR[0][0]}:{VR[0][0]+3}], v5 offset:32768")
    e(f"ds_read_b128 v[{VR[0][1]}:{VR[0][1]+3}], v5 offset:33280")
    e("s_mov_b64 exec, -1")
    e("s_waitcnt lgkmcnt(0)")
    for t in range(2):
        s = S[0][t]; c = S[1][t]
        e(f"v_mfma_f32_32x32x16_bf16 v[{s}:{s+15}], v[{KR[0]}:{KR[0]+3}], v[{Q[t]}:{Q[t]+3}], v[{c}:{c+15}]")
    e.nop(16)
    for t in range(2):
        for i in range(16): e(f"v_exp_f32 v{S[0][t]+i}, v{S[0][t]+i}")
    e("s_nop 2")
    for t in range(2):
        for hf in range(2):
            s = S[0][t]+8*hf; v = VR[0][hf]; o = O[t]
            e(f"v_smfmac_f32_32x32x32_bf16 v[{o}:{o+15}], v[{v}:{v+3}], v[{s}:{s+7}], v{IDX}")
    e("v_add_u32 v4, 1024, v4")
    e("v_add_u32 v5, 1024, v5")
    e("s_add_u32 s57, s57, 1")
    e("s_cmp_lt_u32 s57, 32")
    e("s_cbranch_scc1 FB_MAIN")
    e.nop(16)

def b_phase2(e):
    e("s_sub_u32 s27, s24, 8")
    e("s_lshr_b32 s28, s27, 1")
    e("s_and_b32 s29, s27, 1")
    e("s_lshl_b32 s30, s25, 6")
    e("s_lshl_b32 s31, s26, 1")
    e("s_add_u32 s30, s30, s31")
    e("s_add_u32 s30, s30, s28")
    e("v_lshlrev_b32 v3, 4, v2")
    e("s_lshl_b32 s45, s25, 2")
    e("s_and_b32 s47, s26, 3")
    e("s_add_u32 s45, s45, s47")
    e("s_lshl_b32 s45, s45, 6")
    e("s_lshl_b32 s47, s28, 5")
    e("s_add_u32 s46, s45, s47")
    e("s_lshl_b32 s46, s46, 10")
    e(f"s_mul_i32 s47, s29, {VF-KF}")
    e("s_add_u32 s46, s46, s47")
    e(f"s_add_u32 s46, s46, {KF}")
    e("s_lshl_b32 s47, s28, 16")
    e("s_lshl_b32 s48, s29, 15")
    e("s_add_u32 s47, s47, s48")
    e("s_lshr_b32 s49, s26, 2")
    e("s_lshl_b32 s49, s49, 3")
    e("s_add_u32 s49, s49, s45")
    e("s_lshl_b32 s50, s27, 1")
    e("s_add_u32 s49, s49, s50")
    e("s_lshl_b32 s49, s49, 10")
    e("s_lshl_b32 s50, s27, 11")
    e(f"s_add_u32 s50, s50, {QB}")
    srd(e, 12, 62, 63, 0x1100000)
    e("s_cmp_lg_u32 s27, 0")
    e("s_cbranch_scc1 B_W1")
    lds_wait(e, F_ST, 4, 4, 51, "ST1")
    get_nonce(e, 4)
    stamp(e, 3)
    e("s_lshl_b32 s51, s25, 1")
    e("s_bfe_u32 s52, s26, 0x10001")
    e("s_add_u32 s51, s51, s52")
    e("s_lshl_b32 s51, s51, 8")
    e(f"s_add_u32 s51, s51, {FE1}")
    gpoll(e, None, 64, 4, 51, "E1")
    e("s_lshl_b32 s51, s25, 7")
    e(f"s_add_u32 s51, s51, {FE2}")
    gpoll(e, None, 32, 4, 51, "E2")
    lds_set(e, F_F1, 4)
    e("s_branch B_G1")
    e.label("B_W1")
    lds_wait(e, F_F1, 1, 4, 51, "F1")
    e.label("B_G1")
    stamp(e, 4)
    def kv():
        e("s_mov_b32 m0, s47")
        e("s_add_u32 s47, s47, 1024")
        e("buffer_load_dwordx4 v3, s[12:15], s46 offen sc1 lds")
        e("s_add_u32 s46, s46, 1024")
    e("s_mov_b32 m0, s50")
    e("s_add_u32 s51, s49, 1024")
    e("buffer_load_dwordx4 v3, s[12:15], s49 offen sc1 lds")
    e("s_add_u32 m0, s50, 1024")
    e("s_nop 0")
    e("buffer_load_dwordx4 v3, s[12:15], s51 offen sc1 lds")
    NC0 = TB2 + 2
    for t in range(NC0): kv()
    e("s_lshl_b32 s31, s30, 12")
    e(f"s_add_u32 s31, s31, {UT}")
    e("s_lshl_b32 s32, s29, 11")
    e("s_add_u32 s31, s31, s32")
    e("s_mul_i32 s33, s28, 6144")
    e(f"s_add_u32 s33, s33, {UB}")
    e("s_mul_i32 s34, s29, 3072")
    e("s_add_u32 s34, s34, s33")
    e("s_add_u32 m0, s34, 512")
    e("s_add_u32 s35, s31, 1024")
    e("buffer_load_dwordx4 v3, s[12:15], s31 offen sc1 lds")
    e("s_add_u32 m0, s34, 2048")
    e("s_nop 0")
    e("buffer_load_dwordx4 v3, s[12:15], s35 offen sc1 lds")
    e("s_waitcnt vmcnt(2)")
    stamp(e, 5)
    e("s_barrier")
    for t in range(NC0, 32): kv()
    e("s_load_dwordx2 s[4:5], s[0:1], 72")
    e("v_and_b32 v4, 31, v2")
    e("v_lshrrev_b32 v5, 5, v2")
    e("v_mul_u32_u24 v6, 1536, v5")
    e("v_lshl_add_u32 v6, v4, 4, v6")
    e("v_add_u32 v6, s34, v6")
    for i in range(4): e(f"v_mov_b32 v{8+i}, 0")
    e("ds_write_b128 v6, v[8:11]")
    e(f"s_mul_i32 s35, s30, {KT_CH}")
    e(f"s_add_u32 s35, s35, {KT}")
    e("s_add_u32 s36, s62, s35")
    e("s_addc_u32 s37, s63, 0")
    e("v_and_b32 v7, 15, v4")
    e("v_lshlrev_b32 v12, 1, v7")
    e("v_lshl_add_u32 v12, v5, 3, v12")
    e("v_lshrrev_b32 v7, 4, v4")
    e("v_lshl_add_u32 v12, v7, 1, v12")
    e("v_lshlrev_b32 v12, 1, v12")
    e("v_xor_b32 v7, 1, v7")
    e("v_mul_u32_u24 v7, 4224, v7")
    e("v_add_u32 v12, v12, v7")
    e("s_lshl_b32 s38, s30, 1")
    e("v_mov_b32 v7, s38")
    e("s_waitcnt lgkmcnt(0)")
    e("global_load_ushort v13, v7, s[4:5]")
    e("s_waitcnt vmcnt(0) lgkmcnt(0)")
    e("v_lshlrev_b32 v13, 16, v13")
    e("s_barrier")
    e(f"s_setprio {OPT.get('cprio', 1)}")
    stamp(e, 6)
    if OPT.get('noconv', 0): e("s_branch CV_DONE")
    e("s_cmp_eq_u32 s29, 0")
    e("s_cbranch_scc0 CV_Y")
    conv_role(e, 0)
    e("s_branch CV_DONE")
    e.label("CV_Y")
    conv_role(e, 1)
    e.label("CV_DONE")
    e("s_waitcnt vmcnt(0)")
    stamp(e, 8)
    lds_inc(e, F_CV, 4)
    e("s_cmp_lg_u32 s27, 0")
    e("s_cbranch_scc1 B_NOY")
    lds_wait(e, F_CV, 4, 4, 51, "CV")
    e("s_lshl_b32 s51, s25, 5")
    e("s_add_u32 s51, s51, s26")
    e("s_lshl_b32 s51, s51, 2")
    e(f"s_add_u32 s51, s51, {FE3}")
    pub1(e, 51, 4)
    ytask(e)
    e.label("B_NOY")
    e("s_load_dwordx2 s[4:5], s[0:1], 16")
    e("s_lshl_b32 s51, s26, 14")
    e("s_lshl_b32 s52, s27, 12")
    e("s_add_u32 s51, s51, s52")
    e("v_and_b32 v4, 31, v2")
    e("v_lshlrev_b32 v4, 7, v4")
    e("v_add_u32 v4, s51, v4")
    e("s_waitcnt lgkmcnt(0)")
    e("global_load_dword v150, v4, s[4:5]")
    e("s_setprio 0")
    stamp(e, 9)

def conv_role(e, role):
    ct = role
    NS = 64 if role == 0 else 96
    SP = (NS//2) - 1
    e(f"v_sub_u32 v7, 3, v5")
    e("v_mul_u32_u24 v14, 1536, v7")
    e("v_lshl_add_u32 v14, v4, 4, v14")
    e("v_add_u32 v14, s33, v14")
    e(f"v_add_u32 v14, {(32+32*ct-SP)*16}, v14")
    e("v_subrev_u32 v15, 3072, v14")
    ACC0, ACC1 = 16, 32
    AR = [48+4*i for i in range(8)]
    A2 = [80+4*i for i in range(6)]
    BR = [104+4*i for i in range(4)]
    PA, PB, PA2 = 6, 3, 4
    order = []
    def ldA(s):
        e(f"global_load_dwordx4 v[{AR[s%8]}:{AR[s%8]+3}], v12, s[36:37] offset:{32*s}"); order.append(('a', s))
    def ldA2(s):
        if role == 0 and 32 <= s < 64:
            e(f"global_load_dwordx4 v[{A2[s%6]}:{A2[s%6]+3}], v12, s[36:37] offset:{32*(s+64)}"); order.append(('b', s))
    def ldB(s):
        sp = s >> 1; r = 14 + (s & 1)
        e(f"ds_read_b128 v[{BR[s%4]}:{BR[s%4]+3}], v{r} offset:{(SP-sp)*16}")
    for s_ in range(PA): ldA(s_)
    for s_ in range(PB): ldB(s_)
    for s_ in range(NS):
        if s_ + PA < NS: ldA(s_ + PA)
        ldA2(s_ + PA2)
        if s_ + PB < NS: ldB(s_ + PB)
        need = [i for i, x in enumerate(order) if x == ('a', s_) or x == ('b', s_)]
        n = len(order) - 1 - max(need)
        nb = min(PB, NS - 1 - s_)
        e(f"s_waitcnt vmcnt({n}) lgkmcnt({nb})")
        a = AR[s_%8]; b = BR[s_%4]
        acc = ACC0 if role == 0 else ACC1
        C = "0" if s_ == 0 else f"v[{acc}:{acc+15}]"
        e(f"v_mfma_f32_32x32x16_bf16 v[{acc}:{acc+15}], v[{a}:{a+3}], v[{b}:{b+3}], {C}")
        if role == 0 and s_ >= 32:
            a2 = A2[s_%6]
            C = "0" if s_ == 32 else f"v[{ACC1}:{ACC1+15}]"
            e(f"v_mfma_f32_32x32x16_bf16 v[{ACC1}:{ACC1+15}], v[{a2}:{a2+3}], v[{b}:{b+3}], {C}")
    e("s_setprio 3")
    stamp(e, 7)
    e("s_lshl_b32 s40, s28, 12")
    e(f"s_add_u32 s40, s40, {STG}")
    e("v_add_u32 v6, s40, v3")
    e("s_lshl_b32 s41, s28, 2")
    e(f"s_add_u32 s41, s41, {F_M0}")
    e("v_mov_b32 v9, s41")
    e("v_mul_u32_u24 v7, 1536, v5")
    e("v_lshl_add_u32 v7, v4, 4, v7")
    e("v_add_u32 v7, s33, v7")
    for g in range(2): e(f"ds_read_b128 v[{64+4*g}:{67+4*g}], v7 offset:{g*3072+(32+32*ct)*16}")
    e("v_lshlrev_b32 v8, 10, v5")
    e("v_lshl_add_u32 v8, v4, 4, v8")
    e("s_lshl_b32 s43, s30, 12")
    e(f"s_add_u32 s43, s43, {YT + ct*512}")
    e("v_add_u32 v8, s43, v8")
    e.nop(6)
    if role == 0:
        for i in range(4): e(f"ds_write_b128 v6, v[{ACC1+4*i}:{ACC1+4*i+3}] offset:{1024*i}")
        e("s_waitcnt lgkmcnt(0)")
        e("v_mov_b32 v10, 1")
        e("s_mov_b64 exec, 1")
        e("ds_write_b32 v9, v10")
        e("s_mov_b64 exec, -1")
        ACC = ACC0
    else:
        e("s_mov_b32 s45, 0x400000")
        e.label("CV_SPIN")
        e("ds_read_b32 v10, v9")
        e("s_sub_u32 s45, s45, 1")
        e("s_waitcnt lgkmcnt(0)")
        e("v_readfirstlane_b32 s42, v10")
        e("s_cmp_eq_u32 s45, 0")
        e("s_cbranch_scc1 CV_GO")
        e("s_cmp_lg_u32 s42, 0")
        e("s_cbranch_scc1 CV_GO")
        e("s_sleep 1")
        e("s_branch CV_SPIN")
        e.label("CV_GO")
        for i in range(4): e(f"ds_read_b128 v[{48+4*i}:{48+4*i+3}], v6 offset:{1024*i}")
        e("s_waitcnt lgkmcnt(0)")
        for i in range(16): e(f"v_add_f32 v{ACC1+i}, v{ACC1+i}, v{48+i}")
        ACC = ACC1
    e("s_waitcnt lgkmcnt(0)")
    for g in range(2):
        for i in range(4):
            dw = 64 + 4*g + (3 - i)
            t = 80
            e(f"v_and_b32 v{t}, 0xffff0000, v{dw}")
            e(f"v_lshlrev_b32 v{t+1}, 16, v{dw}")
            e(f"v_mul_f32 v{t}, v{t}, v13")
            e(f"v_mul_f32 v{t+1}, v{t+1}, v13")
            e(f"v_cvt_pk_bf16_f32 v{t+2}, v{t}, v{t+1}")
            e(f"v_cvt_pk_bf16_f32 v{t+3}, v{ACC+4*g+i}, v{ACC+8+4*g+i}")
            e(f"v_lshlrev_b32 v{t}, 16, v{t+2}")
            e(f"v_and_b32 v{t+1}, 0xffff0000, v{t+2}")
            e(f"v_lshlrev_b32 v{t+4}, 16, v{t+3}")
            e(f"v_and_b32 v{t+5}, 0xffff0000, v{t+3}")
            e(f"v_add_f32 v{t}, v{t}, v{t+4}")
            e(f"v_add_f32 v{t+1}, v{t+1}, v{t+5}")
            e(f"v_cvt_pk_bf16_f32 v{88+4*g+i}, v{t}, v{t+1}")
        e(f"global_store_dwordx4 v8, v[{88+4*g}:{91+4*g}], s[62:63] offset:{2048*g} sc1")

YB = 131072
def ytask(e):
    e("s_load_dwordx2 s[4:5], s[0:1], 80")
    e("s_lshl_b32 s51, s25, 7")
    e(f"s_add_u32 s51, s51, {FE3}")
    gpoll(e, None, 32, 8, 51, "E3")
    e("s_and_b32 s51, s26, 3")
    e("s_lshr_b32 s52, s26, 2")
    e("v_and_b32 v16, 7, v2")
    e("v_lshrrev_b32 v17, 3, v2")
    e("s_lshl_b32 s53, s25, 18")
    e("s_lshl_b32 s54, s51, 10")
    e("s_add_u32 s53, s53, s54")
    e("s_lshl_b32 s54, s52, 7")
    e("s_add_u32 s53, s53, s54")
    e(f"s_add_u32 s53, s53, {YT}")
    e("v_lshlrev_b32 v18, 15, v17")
    e("v_lshl_add_u32 v18, v16, 4, v18")
    e("v_add_u32 v18, s53, v18")
    for k in range(8):
        e(f"global_load_dwordx4 v[{32+4*k}:{35+4*k}], v18, s[62:63] sc1")
        if k < 7: e("v_add_u32 v18, 0x1000, v18")
    e("s_lshl_b32 s53, s52, 8")
    e("s_lshl_b32 s54, s51, 3")
    e("s_add_u32 s53, s53, s54")
    e("v_lshlrev_b32 v19, 5, v17")
    e("v_add_u32 v19, s53, v19")
    e("v_lshlrev_b32 v19, 11, v19")
    e("v_lshl_add_u32 v19, v16, 4, v19")
    e("s_lshl_b32 s53, s25, 7")
    e("s_add_u32 s53, s53, 1024")
    e("v_add_u32 v19, s53, v19")
    e("v_lshlrev_b32 v20, 7, v16")
    e("v_lshl_add_u32 v20, v17, 4, v20")
    e(f"v_add_u32 v20, {YB}, v20")
    e("v_lshlrev_b32 v21, 4, v2")
    e(f"v_add_u32 v21, {YB}, v21")
    e("s_mov_b32 s54, 0x05040100")
    e("s_mov_b32 s55, 0x07060302")
    e("s_waitcnt vmcnt(0) lgkmcnt(0)")
    for t in range(8):
        sel = "s54" if t % 2 == 0 else "s55"
        o = 64 + 4*(t % 4)
        for c2 in range(4):
            lo = 32 + 4*(2*c2) + (t >> 1); hi = 32 + 4*(2*c2+1) + (t >> 1)
            e(f"v_perm_b32 v{o+c2}, v{hi}, v{lo}, {sel}")
        e(f"ds_write_b128 v20, v[{o}:{o+3}] offset:{1024*t}")
    e("s_waitcnt lgkmcnt(0)")
    for t in range(8): e(f"ds_read_b128 v[{32+4*t}:{35+4*t}], v21 offset:{1024*t}")
    for t in range(8):
        e(f"s_waitcnt lgkmcnt({7-t})")
        e(f"global_store_dwordx4 v19, v[{32+4*t}:{35+4*t}], s[4:5]{' sc1' if OPT.get('ysc',0) else ''}")
        if t < 7: e("v_add_u32 v19, 0x800, v19")

OB3 = 131072 + 8192
def p3_ids(e):
    e("s_lshl_b32 s27, s25, 3")
    e("s_and_b32 s28, s26, 7")
    e("s_add_u32 s27, s27, s28")
    e("s_lshr_b32 s28, s26, 3")

def p3_loader(e):
    e("s_load_dwordx2 s[4:5], s[0:1], 16")
    p3_ids(e)
    e("s_sub_u32 s23, s24, 8")
    e("v_lshlrev_b32 v3, 4, v2")
    e("v_lshrrev_b32 v4, 4, v2")
    e("v_and_b32 v5, 15, v2")
    e("v_lshlrev_b32 v6, 2, v4")
    e("v_xor_b32 v5, v5, v6")
    e("v_lshlrev_b32 v4, 10, v4")
    e("v_lshl_add_u32 v4, v5, 4, v4")
    e("s_lshl_b32 s34, s23, 17")
    e("s_lshl_b32 s35, s23, 15")
    e("s_lshl_b32 s32, s27, 5")
    e("s_lshl_b32 s33, s23, 1")
    e("s_add_u32 s32, s32, s33")
    e("s_lshl_b32 s32, s32, 10")
    e(f"s_add_u32 s32, s32, {OW}")
    e("s_lshl_b32 s33, s23, 11")
    e(f"s_add_u32 s33, s33, 131072")
    srd(e, 12, 62, 63, 0x800000)
    e("s_lshl_b32 s29, s28, 8")
    e("s_waitcnt lgkmcnt(0)")
    e("s_add_u32 s4, s4, s29")
    e("s_addc_u32 s5, s5, 0")
    e("s_mov_b32 s16, s4")
    e("s_and_b32 s17, s5, 0xffff")
    e("s_sub_u32 s18, 524288, s29")
    e("s_mov_b32 s19, 0x20000")
    e("s_lshl_b32 s51, s27, 7")
    e(f"s_add_u32 s51, s51, {FE4}")
    e("s_barrier")
    e("s_barrier")
    e(f"v_mov_b32 v6, {F_FALL}")
    e("ds_read_b32 v7, v6")
    e("s_waitcnt lgkmcnt(0)")
    e("v_readfirstlane_b32 s36, v7")
    e("s_nop 3")
    e("s_cmp_eq_u32 s36, 0")
    e("s_cbranch_scc1 P3L_NOFB")
    e("s_barrier")
    e("s_barrier")
    e.label("P3L_NOFB")
    get_nonce(e, 6)
    for i in range(32):
        e(f"s_add_u32 m0, s35, {i*1024}")
        e(f"s_add_u32 s36, s34, {i*4096}")
        e("buffer_load_dwordx4 v4, s[16:19], s36 offen lds")
    e("s_barrier")
    stamp(e, 10)
    gpoll(e, None, 32, 8, 51, "E4")
    stamp(e, 11)
    for c in range(4):
        for i in range(2):
            e(f"s_add_u32 m0, s33, {(8*c+i)*1024}")
            e(f"s_add_u32 s36, s32, {(8*c+i)*1024}")
            e("buffer_load_dwordx4 v3, s[12:15], s36 offen sc1 lds")
    for c in range(4):
        e(f"s_waitcnt vmcnt({2*(3-c)})")
        e("s_barrier")

def p3_compute(e):
    e("s_load_dwordx2 s[6:7], s[0:1], 80")
    p3_ids(e)
    e("v_lshlrev_b32 v3, 4, v2")
    e("v_add_u32 v6, 131072, v3")
    e("v_lshrrev_b32 v7, 5, v2")
    e("v_bfe_u32 v8, v2, 2, 2")
    e("v_lshl_add_u32 v7, v7, 2, v8")
    e("v_bfe_u32 v9, v2, 4, 1")
    e("v_lshlrev_b32 v9, 1, v9")
    e("v_bfe_u32 v11, v2, 1, 1")
    e("v_add_u32 v9, v9, v11")
    e("s_lshl_b32 s37, s24, 2")
    e("v_add_u32 v9, s37, v9")
    e("v_lshlrev_b32 v8, 2, v8")
    e("v_xor_b32 v9, v9, v8")
    e("v_lshlrev_b32 v7, 8, v7")
    e("v_lshl_add_u32 v7, v9, 4, v7")
    e("v_and_b32 v9, 1, v2")
    e("v_lshl_add_u32 v7, v9, 3, v7")
    e("v_add_u32 v12, 0x10000, v7")
    e("v_and_b32 v10, 31, v2")
    e("v_lshlrev_b32 v10, 11, v10")
    e("v_lshrrev_b32 v9, 5, v2")
    e("v_lshl_add_u32 v10, v9, 3, v10")
    e("s_lshl_b32 s36, s27, 16")
    e("s_lshl_b32 s37, s28, 8")
    e("s_add_u32 s36, s36, s37")
    e("s_lshl_b32 s37, s24, 6")
    e("s_add_u32 s36, s36, s37")
    e("v_add_u32 v10, s36, v10")
    ACC = 16
    def rd(hd):
        b = 32 + 8*(hd % 4)
        va, ho = (7, hd) if hd < 16 else (12, hd-16)
        e(f"ds_read_b128 v[{b}:{b+3}], v6 offset:{hd*1024}")
        e(f"ds_read_b64_tr_b16 v[{b+4}:{b+5}], v{va} offset:{ho*4096}")
        e(f"ds_read_b64_tr_b16 v[{b+6}:{b+7}], v{va} offset:{ho*4096+2048}")
    e("s_barrier")
    for c in range(4):
        e("s_barrier")
        rd(8*c); rd(8*c+1); rd(8*c+2)
        for i in range(8):
            hd = 8*c+i
            if i + 3 < 8:
                rd(hd+3); e("s_waitcnt lgkmcnt(9)")
            else: e(f"s_waitcnt lgkmcnt({3*(7-i)})")
            b = 32 + 8*(hd % 4)
            C = "0" if hd == 0 else f"v[{ACC}:{ACC+15}]"
            e(f"v_mfma_f32_32x32x16_bf16 v[{ACC}:{ACC+15}], v[{b+4}:{b+7}], v[{b}:{b+3}], {C}")
    e.nop(14)
    for i in range(8): e(f"v_cvt_pk_bf16_f32 v{ACC+i}, v{ACC+2*i}, v{ACC+2*i+1}")
    for g in range(4): e(f"global_store_dwordx2 v10, v[{ACC+2*g}:{ACC+2*g+1}], s[6:7] offset:{16*g}{' sc1' if OPT.get('osc',0) else ''}")

def publish(e, items, vt):
    e(f"v_mov_b32 v{vt}, s{items[0]}")
    if len(items) > 1:
        e(f"v_mov_b32 v{vt+2}, s{items[1]}")
        e("v_cmp_eq_u32 vcc, 1, v2")
        e("s_nop 1")
        e(f"v_cndmask_b32 v{vt}, v{vt}, v{vt+2}, vcc")
    e(f"v_mov_b32 v{vt+1}, s60")
    e(f"s_mov_b64 exec, {(1 << len(items)) - 1}")
    e(f"global_store_dword v{vt}, v{vt+1}, s[62:63] sc1")
    e("s_mov_b64 exec, -1")

def gen():
    e = E()
    e("s_cmp_ge_u32 s2, 256")
    e("s_cbranch_scc1 KM_END")
    stamp(e, 0)
    e("s_load_dwordx2 s[62:63], s[0:1], 96")
    e("v_lshrrev_b32 v1, 6, v0")
    e("v_and_b32 v2, 63, v0")
    e("v_readfirstlane_b32 s24, v1")
    e("s_and_b32 s25, s2, 7")
    e("s_lshr_b32 s26, s2, 3")
    e(f"s_mov_b32 s61, {FE1}")
    e("s_cmp_ge_u32 s24, 8")
    e("s_cbranch_scc1 KM_B")
    params_load(e)
    e("s_cmp_ge_u32 s24, 4")
    e("s_cbranch_scc1 KM_A47")
    p1_compute(e)
    e("s_branch KM_A_P1E")
    e.label("KM_A47")
    e("s_cmp_lg_u32 s24, 5")
    e("s_cbranch_scc1 KM_NON_D")
    e("s_cmp_lg_u32 s2, 0")
    e("s_cbranch_scc1 KM_NON_D")
    e("s_load_dwordx2 s[50:51], s[0:1], 88")
    e("s_memrealtime s[52:53]")
    e("s_waitcnt lgkmcnt(0)")
    e("s_or_b32 s52, s52, 1")
    e("v_mov_b32 v6, s52")
    e("v_mov_b32 v7, 0")
    e("s_mov_b64 exec, 1")
    e("global_store_dword v7, v6, s[50:51] sc1")
    e("s_mov_b64 exec, -1")
    e.label("KM_NON_D")
    e("s_cmp_lg_u32 s24, 4")
    e("s_cbranch_scc1 KM_A567")
    e("v_lshlrev_b32 v6, 2, v2")
    e(f"v_add_u32 v6, {FLG}, v6")
    e("v_mov_b32 v7, 0")
    e("s_mov_b32 s40, 0x00ff0f7f")
    e("s_mov_b32 s41, 0")
    e("s_mov_b64 exec, s[40:41]")
    e("ds_write_b32 v6, v7")
    e("s_mov_b64 exec, -1")
    touches(e)
    e("s_waitcnt lgkmcnt(0)")
    for i in range(NST+1): e("s_barrier")
    e("s_branch KM_A_P1E")
    e.label("KM_A567")
    for i in range(NST+1): e("s_barrier")
    e.label("KM_A_P1E")
    stamp(e, 5)
    kgen8(e)
    attn(e)
    e("s_lshl_b32 s36, s28, 3")
    e("s_lshl_b32 s37, s29, 1")
    e("s_add_u32 s36, s36, s37")
    e("s_add_u32 s36, s36, s30")
    e("s_lshl_b32 s36, s36, 5")
    e("s_add_u32 s36, s36, s27")
    e("s_lshl_b32 s36, s36, 2")
    e(f"s_add_u32 s36, s36, {FE4}")
    get_nonce(e, 6)
    e("s_waitcnt vmcnt(0)")
    pub1(e, 36, 6)
    stamp(e, 11)
    e("s_cmp_ge_u32 s24, 4")
    e("s_cbranch_scc1 KM_A47_P3")
    p3_compute(e)
    if PROF["on"]:
        e("s_waitcnt vmcnt(0)")
    stamp_flush(e, 0, 12)
    e("s_endpgm")
    e.label("KM_A47_P3")
    e("s_barrier")
    for c in range(4): e("s_barrier")
    stamp_flush(e, 0, 12)
    e("s_endpgm")
    e.label("KM_B")
    p1_loader(e)
    stamp(e, 2)
    e("s_cmp_eq_u32 s24, 11")
    e("s_cbranch_scc0 KM_NOUT")
    e("s_load_dwordx2 s[50:51], s[0:1], 88")
    e("v_mov_b32 v5, 0")
    e("s_waitcnt lgkmcnt(0)")
    e("global_load_dword v59, v5, s[50:51] sc1")
    ut_finish_a(e)
    ut_finish_b(e)
    e("s_mov_b32 s39, 0x100000")
    e("s_waitcnt vmcnt(0)")
    e.label("UT_NON")
    e("v_readfirstlane_b32 s60, v59")
    e("s_sub_u32 s39, s39, 1")
    e("s_cmp_lg_u32 s60, 0")
    e("s_cbranch_scc1 UT_NOND")
    e("s_cmp_eq_u32 s39, 0")
    e("s_cbranch_scc1 UT_NOND")
    e("global_load_dword v59, v5, s[50:51] sc1")
    e("s_waitcnt vmcnt(0)")
    e("s_branch UT_NON")
    e.label("UT_NOND")
    e("s_lshl_b32 s51, s25, 5")
    e("s_add_u32 s51, s51, s26")
    e("s_lshl_b32 s51, s51, 2")
    e(f"s_add_u32 s51, s51, {FE2}")
    pub1(e, 51, 6)
    e.label("KM_NOUT")
    b_phase2(e)
    p3_loader(e)
    stamp_flush(e, 0, 12)
    e.label("KM_END")
    e("s_endpgm")
    return e.text()
```

```python
from asmlib import *
QF=0; KF=0x200000; VF=0x400000; OW=0x600000; UT=0x800000; KT=0xA00000; YT=0xF00000; FL=0x1200000
KT_CH = 8448
FE1 = FL; FE2 = FL + 4096; FE3 = FL + 5120; FE4 = FL + 8192
NST=16; WR=8; XR=6; WSLOT=12288; XSLOT=8192; WBASE=XR*XSLOT
PITCH=528; KST=4352
UB=131072; STG=143360; QB=152064; EXB=143360; FLG=161792
LDS_SIZE = 163840
F_FALL, F_S1, F_S2, F_F1, F_ST, F_CV, F_F2, F_NON, F_U0, F_U1, F_M0, F_M1 = (FLG+4*i for i in range(12))
TB2 = 3
F_PR = FLG + 64
OPT = {}

def srd(e, d, lo, hi, size):
    e(f"s_mov_b32 s{d}, s{lo}")
    e(f"s_and_b32 s{d+1}, s{hi}, 0xffff")
    e(f"s_mov_b32 s{d+2}, {size}")
    e(f"s_mov_b32 s{d+3}, 0x20000")

def lds_inc(e, addr, vt):
    e("s_waitcnt lgkmcnt(0)")
    e(f"v_mov_b32 v{vt}, {addr}")
    e(f"v_mov_b32 v{vt+1}, 1")
    e("s_mov_b64 exec, 1")
    e(f"ds_add_u32 v{vt}, v{vt+1}")
    e("s_mov_b64 exec, -1")
def lds_wait(e, addr, target, vt, st, tag):
    e(f"v_mov_b32 v{vt}, {addr}")
    e(f"s_mov_b32 s{st+1}, 0x400000")
    e.label(f"LW_{tag}")
    e(f"ds_read_b32 v{vt+1}, v{vt}")
    e(f"s_sub_u32 s{st+1}, s{st+1}, 1")
    e("s_waitcnt lgkmcnt(0)")
    e(f"v_readfirstlane_b32 s{st}, v{vt+1}")
    e(f"s_cmp_eq_u32 s{st+1}, 0")
    e(f"s_cbranch_scc1 LWD_{tag}")
    e(f"s_cmp_ge_u32 s{st}, {target}")
    e(f"s_cbranch_scc1 LWD_{tag}")
    e("s_sleep 1")
    e(f"s_branch LW_{tag}")
    e.label(f"LWD_{tag}")
def gpoll(e, base_sgpr_expr, nl, vt, st, tag):
    e(f"v_and_b32 v{vt}, {nl-1}, v2")
    e(f"v_lshlrev_b32 v{vt}, 2, v{vt}")
    e(f"v_add_u32 v{vt}, s{st}, v{vt}")
    e(f"s_mov_b32 s{st+1}, 0x100000")
    e.label(f"GP_{tag}")
    e(f"global_load_dword v{vt+1}, v{vt}, s[62:63] sc1")
    e(f"s_sub_u32 s{st+1}, s{st+1}, 1")
    e("s_waitcnt vmcnt(0)")
    e(f"v_cmp_eq_u32 vcc, s60, v{vt+1}")
    e(f"s_cmp_eq_u32 s{st+1}, 0")
    e(f"s_cbranch_scc1 GPD_{tag}")
    e("s_cmp_eq_u64 vcc, exec")
    if OPT.get('psleep', 0):
        e(f"s_cbranch_scc1 GPD_{tag}")
        e(f"s_sleep {OPT['psleep']}")
        e(f"s_branch GP_{tag}")
    else:
        e(f"s_cbranch_scc0 GP_{tag}")
    e.label(f"GPD_{tag}")
def pub1(e, st, vt):
    e(f"v_mov_b32 v{vt}, s{st}")
    e(f"v_mov_b32 v{vt+1}, s60")
    e("s_mov_b64 exec, 1")
    e(f"global_store_dword v{vt}, v{vt+1}, s[62:63] sc1")
    e("s_mov_b64 exec, -1")
def lds_set(e, addr, vt):
    e(f"v_mov_b32 v{vt}, {addr}")
    e(f"v_mov_b32 v{vt+1}, 1")
    e("s_mov_b64 exec, 1")
    e(f"ds_write_b32 v{vt}, v{vt+1}")
    e("s_mov_b64 exec, -1")
def get_nonce(e, vt):
    e(f"v_mov_b32 v{vt}, {F_NON}")
    e(f"ds_read_b32 v{vt+1}, v{vt}")
    e("s_waitcnt lgkmcnt(0)")
    e(f"v_readfirstlane_b32 s60, v{vt+1}")
    e("s_nop 3")

def tile_ids(e):
    e("s_lshr_b32 s27, s25, 1")
    e("s_lshl_b32 s27, s27, 3")
    e("s_and_b32 s28, s26, 7")
    e("s_add_u32 s27, s27, s28")
    e("s_and_b32 s28, s25, 1")
    if OPT.get('hqmap', 0) == 0:
        e("s_lshl_b32 s28, s28, 2")
        e("s_lshr_b32 s29, s26, 3")
        e("s_add_u32 s28, s28, s29")
    else:
        e("s_lshr_b32 s29, s26, 3")
        e("s_lshl_b32 s29, s29, 1")
        e("s_add_u32 s28, s28, s29")

def p1_loader(e, with_ut=False):
    e("s_load_dwordx4 s[4:7], s[0:1], 0")
    tile_ids(e)
    e("s_sub_u32 s30, s24, 8")
    e("v_lshrrev_b32 v3, 3, v2")
    e("v_lshlrev_b32 v3, 10, v3")
    e("v_lshrrev_b32 v4, 4, v2")
    e("v_and_b32 v5, 7, v2")
    e("v_xor_b32 v6, v5, v4")
    e("v_xor_b32 v7, 4, v6")
    e("v_lshl_add_u32 v8, v6, 4, v3")
    e("v_lshl_add_u32 v9, v7, 4, v3")
    e("s_lshl_b32 s31, s30, 14")
    e("s_lshl_b32 s34, s30, 11")
    e("s_mul_i32 s35, s30, 192")
    for ii in range(3):
        e(f"v_add_u32 v13, s35, v2")
        if ii: e(f"v_add_u32 v13, {64*ii}, v13")
        e("v_mul_u32_u24 v14, 683, v13")
        e("v_lshrrev_b32 v14, 14, v14")
        e("v_mul_u32_u24 v15, 24, v14")
        e("v_sub_u32 v15, v13, v15")
        e("v_lshrrev_b32 v16, 3, v15")
        e("v_and_b32 v15, 7, v15")
        e("v_bfe_u32 v17, v14, 1, 1")
        e("v_lshlrev_b32 v17, 2, v17")
        e("v_xor_b32 v15, v15, v17")
        e("v_mul_u32_u24 v14, 3072, v14")
        e("v_lshl_add_u32 v14, v16, 10, v14")
        e(f"v_lshl_add_u32 v{10+ii}, v15, 4, v14")
    e("s_mul_i32 s35, s30, 3072")
    e(f"s_add_u32 s35, s35, {WBASE}")
    e("s_lshl_b32 s29, s27, 16")
    e("s_lshl_b32 s33, s28, 7")
    e("s_waitcnt lgkmcnt(0)")
    e("s_add_u32 s4, s4, s29")
    e("s_addc_u32 s5, s5, 0")
    srd(e, 12, 4, 5, 65536)
    e("s_add_u32 s6, s6, s33")
    e("s_addc_u32 s7, s7, 0")
    e("s_mov_b32 s16, s6")
    e("s_and_b32 s17, s7, 0xffff")
    e("s_sub_u32 s18, 1572864, s33")
    e("s_mov_b32 s19, 0x20000")
    if with_ut: ut_task(e, loads=False)
    stamp(e, 1)
    order = []
    ROT = OPT.get('rot', 0)
    if ROT:
        if ROT == 1:
            e("s_lshr_b32 s20, s26, 3"); e("s_lshl_b32 s20, s20, 1")
        elif ROT == 2:
            e("s_and_b32 s20, s26, 7")
        else:
            e("s_lshr_b32 s20, s26, 3"); e("s_lshl_b32 s20, s20, 1"); e("s_and_b32 s21, s26, 1"); e("s_add_u32 s20, s20, s21")
    def dmaX(xs):
        if ROT:
            e(f"s_add_u32 s21, s20, {xs}")
            e("s_and_b32 s21, s21, 7")
            e("s_lshl_b32 s21, s21, 7")
            e("s_add_u32 s21, s21, s31")
        for ii in range(2):
            e(f"s_add_u32 m0, s34, {(xs % XR)*XSLOT + ii*1024}")
            if ROT: e(f"s_add_u32 s32, s21, {ii*8192}")
            else:   e(f"s_add_u32 s32, s31, {xs*128 + ii*8192}")
            e(f"buffer_load_dwordx4 v{8+ii}, s[12:15], s32 offen lds")
            order.append(('x', xs))
    def dmaW(st):
        if ROT:
            e("s_lshl_b32 s33, s20, 1")
            e(f"s_add_u32 s33, s33, {st}")
            e("s_and_b32 s33, s33, 15")
            e("s_mul_i32 s33, s33, 98304")
        else:
            e(f"s_mov_b32 s33, {st*98304}")
        for ii in range(3):
            e(f"s_add_u32 m0, s35, {(st % WR)*WSLOT + ii*1024}")
            e("s_nop 0")
            e(f"buffer_load_dwordx4 v{10+ii}, s[16:19], s33 offen lds")
            order.append(('w', st))
        if with_ut and st == OPT.get('utload', 5):
            ut_loads(e)
            for _ in range(8): order.append(('u', 0))
    nx = [0]; nw = [0]
    def issue_upto(wmax, xmax):
        wm = min(wmax, NST-1); xm = min(xmax, NST//2-1)
        while nw[0] <= wm or nx[0] <= xm:
            if nx[0] <= xm and (2*nx[0] <= nw[0] or nw[0] > wm):
                dmaX(nx[0]); nx[0] += 1
            else:
                dmaW(nw[0]); nw[0] += 1
    PRE = OPT.get('pre', 3)
    issue_upto(PRE-1, (PRE-1)//2)
    for k in range(NST):
        need = [i for i, o in enumerate(order) if o == ('w', k) or o == ('x', k//2)]
        n = len(order) - 1 - max(need)
        e(f"s_waitcnt vmcnt({n})")
        e("s_barrier")
        xfree = (k-2)//2 if k % 2 == 0 else (k-3)//2
        wlim = min(k - 1 + WR, nw[0] + OPT.get('ramp', 2) - 1)
        issue_upto(wlim, min(xfree + XR, (wlim+1)//2))
    e("s_barrier")

def params_load(e):
    e("s_load_dwordx4 s[4:7], s[0:1], 32")
    e("s_load_dwordx4 s[8:11], s[0:1], 48")
    e("s_load_dwordx2 s[12:13], s[0:1], 64")
    e("s_lshl_b32 s28, s25, 6")
    e("s_lshl_b32 s29, s26, 1")
    e("s_add_u32 s28, s28, s29")
    e("s_bfe_u32 s30, s24, 0x10001")
    e("s_and_b32 s31, s24, 1")
    e("s_add_u32 s32, s28, s30")
    e("s_lshl_b32 s33, s32, 7")
    e("s_lshl_b32 s34, s31, 6")
    e("s_add_u32 s33, s33, s34")
    e("v_add_u32 v3, s33, v2")
    e("v_lshlrev_b32 v3, 1, v3")
    e("s_lshl_b32 s33, s32, 1")
    e("v_mov_b32 v4, s33")
    e("s_waitcnt lgkmcnt(0)")
    e("global_load_ushort v160, v3, s[4:5]")
    e("global_load_ushort v161, v3, s[6:7]")
    e("global_load_ushort v162, v3, s[8:9]")
    e("global_load_ushort v163, v3, s[10:11]")
    e("global_load_ushort v164, v4, s[12:13]")

def p1_compute(e):
    e("s_load_dwordx2 s[50:51], s[0:1], 88")
    tile_ids(e)
    e("s_and_b32 s40, s24, 1")
    e("s_lshr_b32 s41, s24, 1")
    e("v_and_b32 v9, 31, v2")
    e("v_lshrrev_b32 v10, 5, v2")
    e("v_bfe_u32 v11, v9, 1, 3")
    e("v_xor_b32 v11, v11, v10")
    e("v_lshlrev_b32 v6, 7, v9")
    e("s_lshl_b32 s29, s40, 12")
    e("v_add_u32 v6, s29, v6")
    e("v_lshl_add_u32 v6, v11, 4, v6")
    e("v_xor_b32 v7, 32, v6")
    e("v_xor_b32 v15, 64, v6")
    e("v_xor_b32 v3, 96, v6")
    XA = [6, 7, 15, 3]
    e("v_bfe_u32 v11, v2, 2, 2")
    e("v_lshl_add_u32 v13, v10, 3, v11")
    e("v_mul_u32_u24 v8, 384, v13")
    e("v_bfe_u32 v11, v2, 3, 1")
    e("v_xor_b32 v11, s41, v11")
    e("v_lshl_add_u32 v8, v11, 6, v8")
    e("v_bfe_u32 v11, v2, 4, 1")
    e("v_lshl_add_u32 v8, v11, 5, v8")
    e("v_and_b32 v11, 3, v2")
    e("v_lshl_add_u32 v8, v11, 3, v8")
    e(f"v_add_u32 v8, {WBASE}, v8")
    e(f"v_add_u32 v4, {4*WSLOT}, v8")
    e("v_lshlrev_b32 v12, 4, v2")
    e("v_and_b32 v11, 19, v9")
    e("v_and_b32 v13, 4, v9")
    e("v_lshl_or_b32 v11, v13, 1, v11")
    e("v_and_b32 v13, 8, v9")
    e("v_lshrrev_b32 v13, 1, v13")
    e("v_or_b32 v11, v11, v13")
    e("v_lshl_add_u32 v11, v10, 5, v11")
    e("v_lshlrev_b32 v13, 4, v11")
    e("v_lshrrev_b32 v11, 4, v9")
    e("v_lshlrev_b32 v14, 16, v11")
    e("v_lshl_add_u32 v14, v10, 8, v14")
    e("v_and_b32 v11, 15, v9")
    e("v_lshl_add_u32 v14, v11, 4, v14")
    srd(e, 20, 62, 63, 0x600000)
    e("v_mov_b32 v5, 0")
    FR = [16, 48]; ACC = [80, 96, 112]
    def frag_reads(st):
        b = FR[st & 1]; L = []
        slot = st % WR
        va, so = (8, slot) if slot < 4 else (4, slot-4)
        for ks in range(2):
            L.append(f"ds_read_b128 v[{b+4*ks}:{b+4*ks+3}], v{XA[2*(st&1)+ks]} offset:{((st//2) % XR)*XSLOT}")
            for nt in range(3):
                r = b + 8 + (ks*3+nt)*4
                off = so*WSLOT + ks*16*384 + nt*128
                L.append(f"ds_read_b64_tr_b16 v[{r}:{r+1}], v{va} offset:{off}")
                L.append(f"ds_read_b64_tr_b16 v[{r+2}:{r+3}], v{va} offset:{off+4*384}")
        return L
    def mfmas(st):
        b = FR[st & 1]; L = []
        for ks in range(2):
            X = f"v[{b+4*ks}:{b+4*ks+3}]"
            for nt in range(3):
                r = b + 8 + (ks*3+nt)*4
                W = f"v[{r}:{r+3}]"
                a = ACC[nt]; A = f"v[{a}:{a+15}]"
                C = "0" if (st == 0 and ks == 0) else A
                if nt < 2: L.append(f"v_mfma_f32_32x32x16_bf16 {A}, {W}, {X}, {C}")
                else:      L.append(f"v_mfma_f32_32x32x16_bf16 {A}, {X}, {W}, {C}")
        return L
    stamp(e, 1)
    e("s_barrier")
    stamp(e, 2)
    for l in frag_reads(0): e(l)
    for st in range(NST):
        e(f"s_waitcnt lgkmcnt(0)")
        e("s_barrier")
        if st == 8:
            e("global_load_dword v159, v5, s[50:51] sc1")
        if st + 1 < NST:
            R = frag_reads(st + 1); M = mfmas(st)
            ri = 0
            for mi, m in enumerate(M):
                e(m)
                k = 3 if mi < 4 else 1
                for _ in range(k):
                    if ri < len(R): e(R[ri]); ri += 1
            while ri < len(R): e(R[ri]); ri += 1
        else:
            for m in mfmas(st): e(m)
    stamp(e, 3)
    e.nop(14)
    e("s_mov_b32 s33, 0x3eb8aa3b")
    e("s_lshl_b32 s36, s28, 2")
    e("s_lshl_b32 s37, s41, 1")
    e("s_add_u32 s36, s36, s37")
    e("s_lshl_b32 s36, s36, 6")
    e("s_lshl_b32 s37, s27, 1")
    e("s_add_u32 s36, s36, s37")
    e("s_add_u32 s36, s36, s40")
    e("s_lshl_b32 s36, s36, 10")
    P = 16
    for nt in (1, 2, 0):
        a = ACC[nt]
        if nt == 0:
            for i in range(16): e(f"v_mul_f32 v{a+i}, s33, v{a+i}")
        for i in range(8): e(f"v_cvt_pk_bf16_f32 v{P+8*nt+i}, v{a+2*i}, v{a+2*i+1}")
        base = (QF, KF, VF)[nt]; second = (65536, 65536, 512)[nt]; va = (12, 13, 14)[nt]
        e(f"s_add_u32 s37, s36, {base}")
        e(f"buffer_store_dwordx4 v[{P+8*nt}:{P+8*nt+3}], v{va}, s[20:23], s37 offen sc1")
        e(f"s_add_u32 s38, s36, {base+second}")
        e(f"buffer_store_dwordx4 v[{P+8*nt+4}:{P+8*nt+7}], v{va}, s[20:23], s38 offen sc1")
    e("s_waitcnt vmcnt(6)")
    e("s_mov_b32 s39, 0x100000")
    e.label("P1C_NON")
    e("v_readfirstlane_b32 s60, v159")
    e("s_sub_u32 s39, s39, 1")
    e("s_cmp_lg_u32 s60, 0")
    e("s_cbranch_scc1 P1C_NOND")
    e("s_cmp_eq_u32 s39, 0")
    e("s_cbranch_scc1 P1C_NOND")
    e("global_load_dword v159, v5, s[50:51] sc1")
    e("s_waitcnt vmcnt(0)")
    e("s_branch P1C_NON")
    e.label("P1C_NOND")
    e("s_lshl_b32 s36, s28, 1")
    e("s_add_u32 s36, s36, s41")
    e("s_lshl_b32 s36, s36, 6")
    e("s_lshl_b32 s37, s27, 1")
    e("s_add_u32 s36, s36, s37")
    e("s_add_u32 s36, s36, s40")
    e("s_lshl_b32 s36, s36, 2")
    e(f"s_add_u32 s61, s36, {FE1}")
    e("s_cmp_lg_u32 s24, 0")
    e("s_cbranch_scc1 P1C_NONON")
    e(f"v_mov_b32 v6, {F_NON}")
    e("v_mov_b32 v7, s60")
    e("ds_write_b32 v6, v7")
    e.label("P1C_NONON")

UTB = 22528
def ut_task(e, loads=True):
    e("s_load_dwordx2 s[42:43], s[0:1], 24")
    e("s_and_b32 s36, s26, 3")
    e("s_lshr_b32 s37, s26, 2")
    e("v_and_b32 v60, 7, v2")
    e("v_lshrrev_b32 v61, 3, v2")
    e("s_lshl_b32 s38, s37, 8")
    e("s_lshl_b32 s39, s36, 3")
    e("s_add_u32 s38, s38, s39")
    e("v_lshlrev_b32 v62, 5, v61")
    e("v_add_u32 v62, s38, v62")
    e("v_lshlrev_b32 v62, 10, v62")
    e("s_lshl_b32 s38, s25, 7")
    e("v_lshl_add_u32 v62, v60, 4, v62")
    e("v_add_u32 v62, s38, v62")
    e("v_add_u32 v63, 0x1000, v62")
    e("s_lshl_b32 s38, s25, 18")
    e("s_lshl_b32 s39, s36, 10")
    e("s_add_u32 s38, s38, s39")
    e("s_lshl_b32 s39, s37, 7")
    e("s_add_u32 s38, s38, s39")
    e(f"s_add_u32 s38, s38, {UT}")
    e("v_lshlrev_b32 v56, 15, v61")
    e("v_lshl_add_u32 v56, v60, 4, v56")
    e("v_add_u32 v56, s38, v56")
    e("v_lshlrev_b32 v57, 7, v60")
    e("v_lshl_add_u32 v57, v61, 4, v57")
    e(f"v_add_u32 v57, {UTB}, v57")
    e("v_lshlrev_b32 v58, 4, v2")
    e(f"v_add_u32 v58, {UTB}, v58")
    e("s_waitcnt lgkmcnt(0)")
    e("s_mov_b32 s40, 0x05040100")
    e("s_mov_b32 s41, 0x07060302")
    if loads: ut_loads(e)

def ut_loads(e):
    for t in range(8):
        if t < 4: e(f"global_load_dwordx4 v[{96+4*t}:{99+4*t}], v62, s[42:43] offset:{1024*t}")
        else:     e(f"global_load_dwordx4 v[{96+4*t}:{99+4*t}], v63, s[42:43] offset:{1024*(t-4)}")

def ut_finish_a(e):
    e("s_waitcnt vmcnt(0)")
    for k in range(8):
        sel = "s40" if k % 2 == 0 else "s41"
        o = 64 + 4*(k % 4)
        for j in range(4):
            lo = 96 + 4*(7-2*j) + (k >> 1)
            hi = 96 + 4*(6-2*j) + (k >> 1)
            e(f"v_perm_b32 v{o+j}, v{hi}, v{lo}, {sel}")
        e(f"ds_write_b128 v57, v[{o}:{o+3}] offset:{1024*k}")
def ut_finish_b(e):
    e("s_waitcnt lgkmcnt(0)")
    for k in range(8): e(f"ds_read_b128 v[{96+4*k}:{99+4*k}], v58 offset:{1024*k}")
    for k in range(8):
        e(f"s_waitcnt lgkmcnt({7-k})")
        e(f"global_store_dwordx4 v56, v[{96+4*k}:{99+4*k}], s[62:63] sc1")
        if k < 7: e("v_add_u32 v56, 0x1000, v56")

def touches(e):
    which = OPT.get('touch', 7)
    if which == 0: return
    e("s_load_dwordx4 s[4:7], s[0:1], 0")
    e("s_lshl_b32 s30, s26, 6")
    e("v_add_u32 v16, s30, v2")
    e("s_mov_b32 s31, 43691")
    regs = {}
    for i in range(3):
        e(f"v_add_u32 v17, {i*2048}, v16")
        e("v_mul_lo_u32 v18, v17, s31")
        e("v_lshrrev_b32 v18, 19, v18")
        e("v_mul_u32_u24 v19, 12, v18")
        e("v_sub_u32 v19, v17, v19")
        e("v_mul_u32_u24 v18, 3072, v18")
        e("v_lshrrev_b32 v20, 2, v19")
        e("v_lshl_add_u32 v18, v20, 10, v18")
        e("v_and_b32 v19, 3, v19")
        e("v_lshl_add_u32 v18, v19, 7, v18")
        e("s_and_b32 s30, s25, 1")
        e("s_lshl_b32 s30, s30, 9")
        e(f"v_add_u32 v{24+i}, s30, v18")
    for i in range(2):
        e(f"v_add_u32 v17, {i*2048}, v16")
        e("v_lshrrev_b32 v18, 9, v17")
        e("v_and_b32 v19, 511, v17")
        e("v_lshlrev_b32 v19, 10, v19")
        e("v_lshl_add_u32 v19, v18, 7, v19")
        e("s_lshr_b32 s30, s25, 1")
        e("s_lshl_b32 s30, s30, 19")
        e(f"v_add_u32 v{28+i}, s30, v19")
    e("s_waitcnt lgkmcnt(0)")
    seq = [("W",24),("X",28),("W",25),("X",29),("W",26)]
    for b, (t, r) in enumerate(seq):
        if which >> b & 1:
            e(f"global_load_dword v{150+b}, v{r}, {'s[6:7]' if t=='W' else 's[4:5]'}")

def kgen8(e):
    e("s_lshl_b32 s28, s25, 6")
    e("s_lshl_b32 s29, s26, 1")
    e("s_add_u32 s28, s28, s29")
    e("s_bfe_u32 s30, s24, 0x10001")
    e("s_and_b32 s31, s24, 1")
    e("s_lshr_b32 s35, s24, 2")
    e("s_add_u32 s32, s28, s30")
    LOG2E="0x3fb8aa3b"; INV2PI="0x3e22f983"
    e("s_cmp_lt_u32 s24, 4")
    e("s_cbranch_scc1 KG_PW")
    e("s_waitcnt vmcnt(0)")
    e("s_branch KG_PD")
    e.label("KG_PW")
    e("s_waitcnt vmcnt(7)")
    e.label("KG_PD")
    e("v_lshlrev_b32 v10, 16, v160")
    e("v_lshlrev_b32 v11, 16, v161")
    e("v_lshlrev_b32 v12, 16, v162")
    e("v_lshlrev_b32 v13, 16, v163")
    e("v_lshlrev_b32 v14, 16, v164")
    e(f"v_mul_f32 v14, {LOG2E}, v14")
    e(f"v_mul_f32 v10, {LOG2E}, v10")
    e("v_exp_f32 v14, v14")
    e("v_exp_f32 v10, v10")
    e("s_nop 0")
    e("v_cvt_pk_bf16_f32 v14, v14, v14")
    e("v_cvt_pk_bf16_f32 v10, v10, v10")
    e("v_lshlrev_b32 v14, 16, v14")
    e("v_lshlrev_b32 v10, 16, v10")
    e("v_mul_f32 v10, v10, v14")
    e("v_mul_f32 v11, v11, v14")
    e(f"v_mul_f32 v10, 0xbfb8aa3b, v10")
    e(f"v_mul_f32 v11, {INV2PI}, v11")
    e("s_lshl_b32 s36, s30, 16")
    e("s_add_u32 s36, s36, 5120")
    e("s_add_u32 s37, s36, 32768")
    e("s_lshl_b32 s38, s31, 8")
    e("v_lshlrev_b32 v15, 2, v2")
    e("v_add_u32 v15, s38, v15")
    def cexp(d, mult, t0, t1):
        if mult is None:
            e(f"v_exp_f32 v{t0}, v10"); e(f"v_fract_f32 v{t1}, v11")
        else:
            e(f"v_mul_f32 v{t0}, {mult}, v10"); e(f"v_mul_f32 v{t1}, {mult}, v11")
            e(f"v_exp_f32 v{t0}, v{t0}"); e(f"v_fract_f32 v{t1}, v{t1}")
        e("s_nop 0")
        e(f"v_cos_f32 v{d}, v{t1}"); e(f"v_sin_f32 v{d+1}, v{t1}")
        e("s_nop 0")
        e(f"v_mul_f32 v{d}, v{d}, v{t0}"); e(f"v_mul_f32 v{d+1}, v{d+1}, v{t0}")
    def cm1(d,z,w): e(f"v_pk_mul_f32 v[{d}:{d+1}], v[{z}:{z+1}], v[{w}:{w+1}] op_sel:[0,0] op_sel_hi:[0,1]")
    def cm2(d,z,w): e(f"v_pk_fma_f32 v[{d}:{d+1}], v[{z}:{z+1}], v[{w}:{w+1}], v[{d}:{d+1}] op_sel:[1,1,0] op_sel_hi:[1,0,1] neg_lo:[1,0,0]")
    def tmp(row): return 60 + (row % 8)
    def wr(row, z, neg):
        e(f"v_cvt_pk_bf16_f32 v{tmp(row)}, v{z}, {'-' if neg else ''}v{z+1}")
        e(f"ds_write_b32 v15, v{tmp(row)} offset:{row*PITCH}")
    def chains(cur, step, nrows, neg, saved):
        alt = [c+16 for c in cur]
        pend = [(r, cur[r]) for r in range(4)]
        row = 4
        while row < nrows:
            n = min(4, nrows-row)
            dst = []
            for i in range(n):
                d = saved.get(row+i, alt[i])
                dst.append(d)
            for i in range(n): cm1(dst[i], cur[i], step)
            for (r, z) in pend: wr(r, z, neg)
            for i in range(n): cm2(dst[i], cur[i], step)
            pend = [(row+i, dst[i]) for i in range(n)]
            newcur = list(cur); newalt = list(alt)
            for i in range(n):
                if dst[i] == alt[i]: newalt[i] = cur[i]
                newcur[i] = dst[i]
            cur, alt = newcur, [a if a not in saved.values() else None for a in newalt]
            for i in range(4):
                if alt[i] is None: alt[i] = 44 + 2*i if (44+2*i) != cur[i] else 28 + 2*i
            row += n
        for (r, z) in pend: wr(r, z, neg)
    e("s_cmp_eq_u32 s35, 0")
    e("s_cbranch_scc0 KG_XP")
    e("v_add_u32 v15, s37, v15")
    W1, W2, W4, W1K = 16, 18, 20, 22
    cexp(W1, None, 4, 5)
    cexp(W1K, "0x44800000", 6, 7)
    cm1(W2, W1, W1); cm2(W2, W1, W1)
    e("v_mov_b32 v28, 1.0"); e("v_mov_b32 v29, 0")
    e(f"v_mov_b32 v30, v{W1}"); e(f"v_mov_b32 v31, v{W1+1}")
    e(f"v_mov_b32 v32, v{W2}"); e(f"v_mov_b32 v33, v{W2+1}")
    cm1(34, W2, W1); cm1(W4, W2, W2); cm2(34, W2, W1); cm2(W4, W2, W2)
    saved = {8:70, 16:72, 24:74, 32:76}
    chains([28,30,32,34], W4, 33, True, saved)
    cm1(52, 70, W1K); cm1(54, 72, W1K); cm1(56, 74, W1K); cm1(58, 76, W1K)
    wr(33, W1K, True)
    cm2(52, 70, W1K); cm2(54, 72, W1K); cm2(56, 74, W1K); cm2(58, 76, W1K)
    wr(34, 52, True); wr(35, 54, True); wr(36, 56, True); wr(37, 58, True)
    e("s_branch KG_TD")
    e.label("KG_XP")
    e("v_add_u32 v15, s36, v15")
    e("v_lshlrev_b32 v12, 16, v162")
    e("v_mul_f32 v12, v12, v14")
    e("v_mul_f32 v13, v13, v14")
    e("v_add_f32 v28, v12, v12")
    e("v_add_f32 v29, v13, v13")
    W32, W64, W128 = 16, 18, 20
    cexp(W32, "0x42000000", 4, 5)
    cm1(W64, W32, W32); cm1(30, 28, W32); cm2(W64, W32, W32); cm2(30, 28, W32)
    cm1(32, 28, W64); cm1(34, 30, W64); cm1(W128, W64, W64)
    cm2(32, 28, W64); cm2(34, 30, W64); cm2(W128, W64, W64)
    chains([28,30,32,34], W128, 32, False, {})
    e.label("KG_TD")
    e("s_lshl_b32 s39, s35, 1")
    e("s_add_u32 s39, s39, s31")
    e("v_and_b32 v5, 31, v2")
    e("v_lshrrev_b32 v6, 5, v2")
    e("v_lshlrev_b32 v7, 4, v6")
    e(f"v_mul_u32_u24 v8, {PITCH}, v5")
    e("v_add_u32 v16, v7, v8")
    e("v_add_u32 v16, s36, v16")
    e("v_cvt_f32_u32 v9, v5")
    e("s_mov_b32 s40, 0")
    e("s_cmp_eq_u32 s39, 1"); e("s_cselect_b32 s40, 0x43800000, s40")
    e("s_cmp_eq_u32 s39, 2"); e("s_cselect_b32 s40, 0x44000000, s40")
    e("s_cmp_eq_u32 s39, 3"); e("s_cselect_b32 s40, 0x44800000, s40")
    e("v_add_f32 v17, s40, v9")
    e("v_cvt_pk_bf16_f32 v17, v17, v17")
    e("v_lshlrev_b32 v17, 16, v17")
    e("v_subrev_f32 v17, s40, v17")
    e("v_cvt_u32_f32 v17, v17")
    e("v_lshrrev_b32 v18, 3, v17")
    e("v_add_u32 v18, 33, v18")
    e("s_cmp_eq_u32 s39, 3")
    e("s_cselect_b64 vcc, -1, 0")
    e("v_cndmask_b32 v17, v17, v18, vcc")
    e(f"v_mul_u32_u24 v17, {PITCH}, v17")
    e("v_add_u32 v17, v7, v17")
    e("v_add_u32 v17, s37, v17")
    stamp(e, 6)
    lds_inc(e, F_S1, 18)
    lds_wait(e, F_S1, 8, 18, 41, "S1")
    stamp(e, 7)
    def rd(ks):
        b = 20 + 8*(ks % 4)
        e(f"ds_read_b128 v[{b}:{b+3}], v16 offset:{32*ks}")
        e(f"ds_read_b128 v[{b+4}:{b+7}], v17 offset:{32*ks}")
    rd(0); rd(1); rd(2)
    for ks in range(16):
        if ks + 3 < 16:
            rd(ks+3); e("s_waitcnt lgkmcnt(6)")
        else: e(f"s_waitcnt lgkmcnt({2*(15-ks)})")
        b = 20 + 8*(ks % 4)
        C = "0" if ks == 0 else "v[64:79]"
        e(f"v_mfma_f32_32x32x16_bf16 v[64:79], v[{b+4}:{b+7}], v[{b}:{b+3}], {C}")
    e("s_cmp_ge_u32 s24, 4")
    e("s_cbranch_scc1 KG_NOST")
    e("s_waitcnt vmcnt(0)")
    pub1(e, 61, 18)
    lds_inc(e, F_ST, 18)
    e.label("KG_NOST")
    stamp(e, 4)
    e(f"s_mul_i32 s36, s30, {KST}")
    e(f"s_add_u32 s36, s36, {STG}")
    e("v_lshlrev_b32 v7, 6, v5")
    e("v_lshl_add_u32 v7, v6, 3, v7")
    e("v_add_u32 v7, s36, v7")
    e("v_add_u32 v7, 64, v7")
    e("s_mov_b32 s40, 0xff")
    e("s_cmp_eq_u32 s39, 1"); e("s_cselect_b32 s40, 0xff00, s40")
    e("s_cmp_eq_u32 s39, 2"); e("s_cselect_b32 s40, 0xffff0000, s40")
    e("s_cmp_eq_u32 s39, 3"); e("s_cselect_b32 s40, -1, s40")
    e("s_cselect_b32 s42, 2048, 0")
    e("s_mov_b32 s41, s40")
    e("v_add_u32 v7, s42, v7")
    e("v_mov_b32 v20, 0")
    e("v_lshlrev_b32 v21, 2, v2")
    e("v_add_u32 v21, s36, v21")
    e.nop(6)
    for i in range(8): e(f"v_cvt_pk_bf16_f32 v{64+i}, v{64+2*i}, v{65+2*i}")
    e("s_mov_b64 exec, s[40:41]")
    for g in range(4): e(f"ds_write_b64 v7, v[{64+2*g}:{65+2*g}] offset:{16*g}")
    e("s_cmp_lg_u32 s39, 0")
    e("s_cbranch_scc1 KG_NP")
    e("s_mov_b64 exec, 0xffff")
    e("ds_write_b32 v21, v20")
    e("s_mov_b32 s40, -1")
    e("s_mov_b32 s41, 0xffff")
    e("s_mov_b64 exec, s[40:41]")
    e("ds_write_b32 v21, v20 offset:4160")
    e.label("KG_NP")
    e("s_mov_b64 exec, -1")
    lds_inc(e, F_S2, 18)
    lds_wait(e, F_S2, 8, 18, 41, "S2")
    e("s_lshl_b32 s37, s39, 6")
    e("v_add_u32 v5, s37, v2")
    e("v_lshlrev_b32 v6, 4, v5")
    e("v_add_u32 v7, s36, v6")
    e(f"s_mul_i32 s38, s32, {KT_CH}")
    e(f"s_add_u32 s38, s38, {KT}")
    e("s_add_u32 s18, s62, s38")
    e("s_addc_u32 s19, s63, 0")
    e("v_add_u32 v8, 0x1000, v6")
    e("v_add_u32 v30, 4224, v6")
    e(f"v_add_u32 v42, {4224+4096}, v6")
    e(f"ds_read_b128 v[20:23], v7")
    e(f"ds_read_b32 v24, v7 offset:16")
    e(f"ds_read_b128 v[32:35], v7 offset:4096")
    e(f"ds_read_b32 v36, v7 offset:4112")
    e("s_waitcnt lgkmcnt(0)")
    for i in range(4): e(f"v_alignbit_b32 v{26+i}, v{21+i}, v{20+i}, 16")
    KSC = " sc1" if OPT.get('ksc', 0) else ""
    e(f"global_store_dwordx4 v6, v[20:23], s[18:19]{KSC}")
    e(f"global_store_dwordx4 v30, v[26:29], s[18:19]{KSC}")
    e("v_cmp_gt_u32 vcc, 8, v5")
    e("s_and_saveexec_b64 s[40:41], vcc")
    e("s_cbranch_execz KG_RB_SKIP")
    for i in range(4): e(f"v_alignbit_b32 v{38+i}, v{33+i}, v{32+i}, 16")
    e(f"global_store_dwordx4 v8, v[32:35], s[18:19]{KSC}")
    e(f"global_store_dwordx4 v42, v[38:41], s[18:19]{KSC}")
    e.label("KG_RB_SKIP")
    e("s_mov_b64 exec, -1")

S = [[16,32],[48,64]]; O = [80,96]; Q = [112,116]; KR = [120,124]; VR = [[128,132],[136,140]]
IDX = 144; VK, VV = 145, 146; T0 = 148

def attn(e):
    e("s_lshl_b32 s27, s25, 2")
    e("s_and_b32 s28, s26, 3")
    e("s_add_u32 s27, s27, s28")
    e("s_lshr_b32 s28, s26, 2")
    e("s_and_b32 s29, s24, 3")
    e("s_lshr_b32 s30, s24, 2")
    e("v_lshlrev_b32 v3, 4, v2")
    srd(e, 12, 62, 63, 0x800000)
    e("s_lshl_b32 s34, s30, 16")
    e(f"v_add_u32 v{VK}, s34, v3")
    e("v_and_b32 v4, 15, v2")
    e("v_lshrrev_b32 v5, 5, v2")
    e("v_lshlrev_b32 v4, 4, v4")
    e("v_lshl_add_u32 v4, v5, 8, v4")
    e(f"v_add_u32 v{VV}, s34, v4")
    e(f"v_mov_b32 v{IDX}, 0xdddd")
    e("v_and_b32 v4, 31, v2")
    e("v_cmp_eq_u32 vcc, 16, v4")
    e("v_cmp_eq_u32 s[44:45], 20, v4")
    e("s_nop 1")
    e("s_or_b64 vcc, vcc, s[44:45]")
    e("v_mov_b32 v5, 0x3f803f80")
    e("v_mov_b32 v6, 0")
    e("s_nop 1")
    e("v_cndmask_b32 v6, v6, v5, vcc")
    for b in range(2):
        for hf in range(2):
            for i in range(4): e(f"v_mov_b32 v{VR[b][hf]+i}, v6")
    e("s_mov_b32 s46, 0xffff")
    e("s_mov_b32 s47, 0xffff")
    for t in range(2):
        for i in range(16): e(f"v_mov_b32 v{O[t]+i}, 0")
    e("s_lshl_b32 s35, s29, 11")
    e(f"s_add_u32 s35, s35, {QB}")
    e("v_add_u32 v4, s35, v3")
    def ldK(t):  return f"ds_read_b128 v[{KR[t&1]}:{KR[t&1]+3}], v{VK} offset:{t*1024}"
    def ldV(t):
        b = t & 1
        return ["s_mov_b64 exec, s[46:47]",
                f"ds_read_b128 v[{VR[b][0]}:{VR[b][0]+3}], v{VV} offset:{32768+t*1024}",
                f"ds_read_b128 v[{VR[b][1]}:{VR[b][1]+3}], v{VV} offset:{32768+t*1024+512}",
                "s_mov_b64 exec, -1"]
    def qk(t, tile):
        s = S[t&1][tile]
        return f"v_mfma_f32_32x32x16_bf16 v[{s}:{s+15}], v[{KR[t&1]}:{KR[t&1]+3}], v[{Q[tile]}:{Q[tile]+3}], 0"
    def pv(t, tile, hf):
        s = S[t&1][tile] + 8*hf; v = VR[t&1][hf]; o = O[tile]
        return f"v_smfmac_f32_32x32x32_bf16 v[{o}:{o+15}], v[{v}:{v+3}], v[{s}:{s+7}], v{IDX}"
    stamp(e, 8)
    e("s_barrier")
    stamp(e, 9)
    e(f"ds_read_b128 v[{Q[0]}:{Q[0]+3}], v4")
    e(f"ds_read_b128 v[{Q[1]}:{Q[1]+3}], v4 offset:1024")
    e(ldK(0)); e(ldK(1))
    for l in ldV(0): e(l)
    e("s_lshl_b32 s57, s24, 2")
    e(f"s_add_u32 s57, s57, {F_PR}")
    e(f"v_mov_b32 v{T0+2}, s57")
    e(f"s_xor_b32 s57, s57, 16")
    e(f"v_mov_b32 v{T0+3}, s57")
    e(f"s_setprio {OPT.get('lop', 1)}")
    e("s_waitcnt lgkmcnt(0)")
    e(qk(0,0)); e(qk(0,1))
    e.nop(10)
    NT = 32
    for t in range(NT):
        sa, sb = S[t&1]
        ex = lambda r: e(f"v_exp_f32 v{r}, v{r}")
        if t == TB2:
            e("s_waitcnt vmcnt(0)")
            e("s_barrier")
        DP = OPT.get('dyn', 4)
        e("s_waitcnt lgkmcnt(0)")
        if DP and t >= DP and t % DP == 0 and t < NT - 2:
            e(f"v_readfirstlane_b32 s57, v{T0+1}")
            e(f"s_cmp_gt_u32 s57, {t-1}")
            e(f"s_setprio {OPT.get('hip', 2)}")
            e(f"s_cbranch_scc1 AT_PF{t}")
            e(f"s_setprio {OPT.get('lop', 1)}")
            e.label(f"AT_PF{t}")
        if t+1 < NT: e(qk(t+1, 0))
        if DP and t % DP == DP - 1 and t < NT - 3:
            e(f"v_mov_b32 v{T0}, {t+1}")
            e(f"ds_write_b32 v{T0+2}, v{T0}")
            e(f"ds_read_b32 v{T0+1}, v{T0+3}")
        for i in range(0,4): ex(sa+i)
        if t > 0: e(pv(t-1, 1, 1))
        if t+2 < NT: e(ldK(t+2))
        if t+1 < NT:
            for l in ldV(t+1): e(l)
        for i in range(4,9): ex(sa+i)
        if t+1 < NT: e(qk(t+1, 1))
        for i in range(9,14): ex(sa+i)
        e(pv(t, 0, 0))
        for i in range(14,16): ex(sa+i)
        for i in range(0,3): ex(sb+i)
        e(pv(t, 0, 1))
        for i in range(3,10): ex(sb+i)
        e(pv(t, 1, 0))
        for i in range(10,16): ex(sb+i)
    e("s_nop 1")
    e(pv(NT-1, 1, 1))
    e("s_setprio 0")
    stamp(e, 10)
    e.nop(14)
    finalize(e, True)
    e("s_branch AT_DONE")
    e.label("AT_FALLBACK")
    e("s_barrier")
    fallback(e)
    finalize(e, False)
    e.label("AT_DONE")

def finalize(e, check):
    sfx = "C" if check else "F"
    if check:
        e(f"v_mov_b32 v{T0}, 0")
        for t in range(2):
            for i in range(8): e(f"v_fma_f32 v{T0}, v{O[t]+i}, 0, v{T0}")
        e("s_mov_b32 s48, 0x21800000")
        e("s_mov_b32 s49, 0x5d800000")
        e(f"v_cmp_u_f32 vcc, v{T0}, v{T0}")
        for t in range(2):
            e(f"v_cmp_nle_f32 s[50:51], s48, v{O[t]+8}")
            e(f"v_cmp_nge_f32 s[58:59], s49, v{O[t]+8}")
            e("s_nop 1")
            e("s_or_b64 vcc, vcc, s[50:51]")
            e("s_or_b64 vcc, vcc, s[58:59]")
        e("s_cmp_eq_u64 vcc, 0")
        e(f"s_cbranch_scc1 AT_OK{sfx}")
        e("v_mov_b32 v4, 1")
        e(f"v_mov_b32 v5, {F_FALL}")
        e("ds_write_b32 v5, v4")
        e.label(f"AT_OK{sfx}")
    else:
        e("s_barrier")
    e("s_mul_i32 s52, s24, 2304")
    e(f"s_add_u32 s52, s52, {EXB}")
    e("v_lshlrev_b32 v4, 4, v2")
    e("v_add_u32 v4, s52, v4")
    e("v_lshlrev_b32 v5, 2, v2")
    e("v_add_u32 v5, s52, v5")
    if check:
        e("s_waitcnt lgkmcnt(0)")
        e("s_barrier")
        if OPT.get('tailprof', 0): stamp(e, 7)
    e("s_cmp_eq_u32 s30, 0")
    e(f"s_cbranch_scc1 AT_SB{sfx}")
    e(f"ds_write_b128 v4, v[{O[0]}:{O[0]+3}]")
    e(f"ds_write_b128 v4, v[{O[0]+4}:{O[0]+7}] offset:1024")
    e(f"ds_write_b32 v5, v{O[0]+8} offset:2048")
    e("s_nop 1")
    for i in range(9): e(f"v_mov_b32 v{O[0]+i}, v{O[1]+i}")
    e(f"s_branch AT_SD{sfx}")
    e.label(f"AT_SB{sfx}")
    e(f"ds_write_b128 v4, v[{O[1]}:{O[1]+3}]")
    e(f"ds_write_b128 v4, v[{O[1]+4}:{O[1]+7}] offset:1024")
    e(f"ds_write_b32 v5, v{O[1]+8} offset:2048")
    e.label(f"AT_SD{sfx}")
    e("s_waitcnt lgkmcnt(0)")
    e("s_barrier")
    if check and OPT.get('tailprof', 0): stamp(e, 8)
    e("s_xor_b32 s53, s24, 4")
    e("s_mul_i32 s53, s53, 2304")
    e(f"s_add_u32 s53, s53, {EXB}")
    e("v_lshlrev_b32 v4, 4, v2")
    e("v_add_u32 v4, s53, v4")
    e("v_lshlrev_b32 v5, 2, v2")
    e("v_add_u32 v5, s53, v5")
    e(f"ds_read_b128 v[{T0}:{T0+3}], v4")
    e(f"ds_read_b128 v[{T0+4}:{T0+7}], v4 offset:1024")
    e(f"ds_read_b32 v{T0+8}, v5 offset:2048")
    if check:
        e(f"v_mov_b32 v6, {F_FALL}")
        e(f"ds_read_b32 v7, v6")
    e("s_waitcnt lgkmcnt(0)")
    if check:
        e("v_readfirstlane_b32 s54, v7")
        e("s_nop 3")
        e("s_cmp_lg_u32 s54, 0")
        e("s_cbranch_scc1 AT_FALLBACK")
    for i in range(9): e(f"v_add_f32 v{O[0]+i}, v{O[0]+i}, v{T0+i}")
    e(f"v_rcp_f32 v{T0}, v{O[0]+8}")
    e("s_nop 0")
    for i in range(8): e(f"v_mul_f32 v{O[0]+i}, v{O[0]+i}, v{T0}")
    for i in range(4): e(f"v_cvt_pk_bf16_f32 v{T0+4+i}, v{O[0]+2*i}, v{O[0]+2*i+1}")
    e("s_lshl_b32 s55, s28, 3")
    e("s_lshl_b32 s56, s29, 1")
    e("s_add_u32 s55, s55, s56")
    e("s_add_u32 s55, s55, s30")
    e("s_lshl_b32 s55, s55, 5")
    e("s_add_u32 s55, s55, s27")
    e("s_lshl_b32 s55, s55, 10")
    e(f"s_add_u32 s55, s55, {OW}")
    e(f"buffer_store_dwordx4 v[{T0+4}:{T0+7}], v3, s[12:15], s55 offen sc1")
    if check and OPT.get('tailprof', 0): stamp(e, 9)

def fallback(e):
    M = [T0+10, T0+11]
    e(f"v_mov_b32 v{M[0]}, 0xff800000")
    e(f"v_mov_b32 v{M[1]}, 0xff800000")
    e("v_lshlrev_b32 v4, 4, v2")
    e("s_mov_b32 s57, 0")
    e.label("FB_MAX")
    e(f"ds_read_b128 v[{KR[0]}:{KR[0]+3}], v4")
    e("s_waitcnt lgkmcnt(0)")
    for t in range(2):
        s = S[0][t]
        e(f"v_mfma_f32_32x32x16_bf16 v[{s}:{s+15}], v[{KR[0]}:{KR[0]+3}], v[{Q[t]}:{Q[t]+3}], 0")
    e.nop(16)
    for t in range(2):
        s = S[0][t]
        for i in range(0,16,2): e(f"v_max3_f32 v{M[t]}, v{s+i}, v{s+i+1}, v{M[t]}")
    e("s_add_u32 s57, s57, 1")
    e("s_cmp_eq_u32 s57, 32")
    e("s_movk_i32 s58, 1024")
    e("s_cselect_b32 s58, 33792, s58")
    e("v_add_u32 v4, s58, v4")
    e("s_cmp_lt_u32 s57, 64")
    e("s_cbranch_scc1 FB_MAX")
    for t in range(2):
        e(f"v_mov_b32 v5, v{M[t]}")
        e("s_nop 1")
        e(f"v_permlane32_swap_b32 v{M[t]}, v5")
        e("s_nop 1")
        e(f"v_max_f32 v{M[t]}, v{M[t]}, v5")
        for i in range(16): e(f"v_sub_f32 v{S[1][t]+i}, 0, v{M[t]}")
    for t in range(2):
        for i in range(16): e(f"v_mov_b32 v{O[t]+i}, 0")
    e(f"v_mov_b32 v4, v{VK}")
    e(f"v_mov_b32 v5, v{VV}")
    e("s_mov_b32 s57, 0")
    e.label("FB_MAIN")
    e(f"ds_read_b128 v[{KR[0]}:{KR[0]+3}], v4")
    e("s_mov_b64 exec, s[46:47]")
    e(f"ds_read_b128 v[{VR[0][0]}:{VR[0][0]+3}], v5 offset:32768")
    e(f"ds_read_b128 v[{VR[0][1]}:{VR[0][1]+3}], v5 offset:33280")
    e("s_mov_b64 exec, -1")
    e("s_waitcnt lgkmcnt(0)")
    for t in range(2):
        s = S[0][t]; c = S[1][t]
        e(f"v_mfma_f32_32x32x16_bf16 v[{s}:{s+15}], v[{KR[0]}:{KR[0]+3}], v[{Q[t]}:{Q[t]+3}], v[{c}:{c+15}]")
    e.nop(16)
    for t in range(2):
        for i in range(16): e(f"v_exp_f32 v{S[0][t]+i}, v{S[0][t]+i}")
    e("s_nop 2")
    for t in range(2):
        for hf in range(2):
            s = S[0][t]+8*hf; v = VR[0][hf]; o = O[t]
            e(f"v_smfmac_f32_32x32x32_bf16 v[{o}:{o+15}], v[{v}:{v+3}], v[{s}:{s+7}], v{IDX}")
    e("v_add_u32 v4, 1024, v4")
    e("v_add_u32 v5, 1024, v5")
    e("s_add_u32 s57, s57, 1")
    e("s_cmp_lt_u32 s57, 32")
    e("s_cbranch_scc1 FB_MAIN")
    e.nop(16)

def b_phase2(e):
    e("s_sub_u32 s27, s24, 8")
    e("s_lshr_b32 s28, s27, 1")
    e("s_and_b32 s29, s27, 1")
    e("s_lshl_b32 s30, s25, 6")
    e("s_lshl_b32 s31, s26, 1")
    e("s_add_u32 s30, s30, s31")
    e("s_add_u32 s30, s30, s28")
    e("v_lshlrev_b32 v3, 4, v2")
    e("s_lshl_b32 s45, s25, 2")
    e("s_and_b32 s47, s26, 3")
    e("s_add_u32 s45, s45, s47")
    e("s_lshl_b32 s45, s45, 6")
    e("s_lshl_b32 s47, s28, 5")
    e("s_add_u32 s46, s45, s47")
    e("s_lshl_b32 s46, s46, 10")
    e(f"s_mul_i32 s47, s29, {VF-KF}")
    e("s_add_u32 s46, s46, s47")
    e(f"s_add_u32 s46, s46, {KF}")
    e("s_lshl_b32 s47, s28, 16")
    e("s_lshl_b32 s48, s29, 15")
    e("s_add_u32 s47, s47, s48")
    e("s_lshr_b32 s49, s26, 2")
    e("s_lshl_b32 s49, s49, 3")
    e("s_add_u32 s49, s49, s45")
    e("s_lshl_b32 s50, s27, 1")
    e("s_add_u32 s49, s49, s50")
    e("s_lshl_b32 s49, s49, 10")
    e("s_lshl_b32 s50, s27, 11")
    e(f"s_add_u32 s50, s50, {QB}")
    srd(e, 12, 62, 63, 0x1100000)
    e("s_cmp_lg_u32 s27, 0")
    e("s_cbranch_scc1 B_W1")
    lds_wait(e, F_ST, 4, 4, 51, "ST1")
    get_nonce(e, 4)
    stamp(e, 3)
    e("s_lshl_b32 s51, s25, 7")
    e(f"s_add_u32 s51, s51, {FE2}")
    gpoll(e, None, 32, 4, 51, "E2")
    e("s_lshl_b32 s51, s25, 1")
    e("s_bfe_u32 s52, s26, 0x10001")
    e("s_add_u32 s51, s51, s52")
    e("s_lshl_b32 s51, s51, 8")
    e(f"s_add_u32 s51, s51, {FE1}")
    gpoll(e, None, 64, 4, 51, "E1")
    lds_set(e, F_F1, 4)
    e("s_branch B_G1")
    e.label("B_W1")
    lds_wait(e, F_F1, 1, 4, 51, "F1")
    e.label("B_G1")
    stamp(e, 4)
    def kv():
        e("s_mov_b32 m0, s47")
        e("s_add_u32 s47, s47, 1024")
        e("buffer_load_dwordx4 v3, s[12:15], s46 offen sc1 lds")
        e("s_add_u32 s46, s46, 1024")
    e("s_mov_b32 m0, s50")
    e("s_add_u32 s51, s49, 1024")
    e("buffer_load_dwordx4 v3, s[12:15], s49 offen sc1 lds")
    e("s_add_u32 m0, s50, 1024")
    e("s_nop 0")
    e("buffer_load_dwordx4 v3, s[12:15], s51 offen sc1 lds")
    NC0 = TB2 + 2
    for t in range(NC0): kv()
    e("s_lshl_b32 s31, s30, 12")
    e(f"s_add_u32 s31, s31, {UT}")
    e("s_lshl_b32 s32, s29, 11")
    e("s_add_u32 s31, s31, s32")
    e("s_mul_i32 s33, s28, 6144")
    e(f"s_add_u32 s33, s33, {UB}")
    e("s_mul_i32 s34, s29, 3072")
    e("s_add_u32 s34, s34, s33")
    e("s_add_u32 m0, s34, 512")
    e("s_add_u32 s35, s31, 1024")
    e("buffer_load_dwordx4 v3, s[12:15], s31 offen sc1 lds")
    e("s_add_u32 m0, s34, 2048")
    e("s_nop 0")
    e("buffer_load_dwordx4 v3, s[12:15], s35 offen sc1 lds")
    e("s_waitcnt vmcnt(2)")
    stamp(e, 5)
    e("s_barrier")
    for t in range(NC0, 32): kv()
    e("s_load_dwordx2 s[4:5], s[0:1], 72")
    e("v_and_b32 v4, 31, v2")
    e("v_lshrrev_b32 v5, 5, v2")
    e("v_mul_u32_u24 v6, 1536, v5")
    e("v_lshl_add_u32 v6, v4, 4, v6")
    e("v_add_u32 v6, s34, v6")
    for i in range(4): e(f"v_mov_b32 v{8+i}, 0")
    e("ds_write_b128 v6, v[8:11]")
    e(f"s_mul_i32 s35, s30, {KT_CH}")
    e(f"s_add_u32 s35, s35, {KT}")
    e("s_add_u32 s36, s62, s35")
    e("s_addc_u32 s37, s63, 0")
    e("v_and_b32 v7, 15, v4")
    e("v_lshlrev_b32 v12, 1, v7")
    e("v_lshl_add_u32 v12, v5, 3, v12")
    e("v_lshrrev_b32 v7, 4, v4")
    e("v_lshl_add_u32 v12, v7, 1, v12")
    e("v_lshlrev_b32 v12, 1, v12")
    e("v_xor_b32 v7, 1, v7")
    e("v_mul_u32_u24 v7, 4224, v7")
    e("v_add_u32 v12, v12, v7")
    e("s_lshl_b32 s38, s30, 1")
    e("v_mov_b32 v7, s38")
    e("s_waitcnt lgkmcnt(0)")
    e("global_load_ushort v13, v7, s[4:5]")
    e("s_waitcnt vmcnt(0) lgkmcnt(0)")
    e("v_lshlrev_b32 v13, 16, v13")
    e("s_barrier")
    e(f"s_setprio {OPT.get('cprio', 1)}")
    stamp(e, 6)
    if OPT.get('noconv', 0): e("s_branch CV_DONE")
    e("s_cmp_eq_u32 s29, 0")
    e("s_cbranch_scc0 CV_Y")
    conv_role(e, 0)
    e("s_branch CV_DONE")
    e.label("CV_Y")
    conv_role(e, 1)
    e.label("CV_DONE")
    e("s_waitcnt vmcnt(0)")
    stamp(e, 8)
    lds_inc(e, F_CV, 4)
    e("s_cmp_lg_u32 s27, 0")
    e("s_cbranch_scc1 B_NOY")
    lds_wait(e, F_CV, 4, 4, 51, "CV")
    e("s_lshl_b32 s51, s25, 5")
    e("s_add_u32 s51, s51, s26")
    e("s_lshl_b32 s51, s51, 2")
    e(f"s_add_u32 s51, s51, {FE3}")
    pub1(e, 51, 4)
    ytask(e)
    e.label("B_NOY")
    e("s_load_dwordx2 s[4:5], s[0:1], 16")
    e("s_lshl_b32 s51, s26, 14")
    e("s_lshl_b32 s52, s27, 12")
    e("s_add_u32 s51, s51, s52")
    e("v_and_b32 v4, 31, v2")
    e("v_lshlrev_b32 v4, 7, v4")
    e("v_add_u32 v4, s51, v4")
    e("s_waitcnt lgkmcnt(0)")
    e("global_load_dword v150, v4, s[4:5]")
    e("s_setprio 0")
    stamp(e, 9)

def conv_role(e, role):
    ct = role
    NS = 64 if role == 0 else 96
    SP = (NS//2) - 1
    e(f"v_sub_u32 v7, 3, v5")
    e("v_mul_u32_u24 v14, 1536, v7")
    e("v_lshl_add_u32 v14, v4, 4, v14")
    e("v_add_u32 v14, s33, v14")
    e(f"v_add_u32 v14, {(32+32*ct-SP)*16}, v14")
    e("v_subrev_u32 v15, 3072, v14")
    ACC0, ACC1 = 16, 32
    AR = [48+4*i for i in range(8)]
    A2 = [80+4*i for i in range(6)]
    BR = [104+4*i for i in range(4)]
    PA, PB, PA2 = 6, 3, 4
    order = []
    def ldA(s):
        e(f"global_load_dwordx4 v[{AR[s%8]}:{AR[s%8]+3}], v12, s[36:37] offset:{32*s}"); order.append(('a', s))
    def ldA2(s):
        if role == 0 and 32 <= s < 64:
            e(f"global_load_dwordx4 v[{A2[s%6]}:{A2[s%6]+3}], v12, s[36:37] offset:{32*(s+64)}"); order.append(('b', s))
    def ldB(s):
        sp = s >> 1; r = 14 + (s & 1)
        e(f"ds_read_b128 v[{BR[s%4]}:{BR[s%4]+3}], v{r} offset:{(SP-sp)*16}")
    for s_ in range(PA): ldA(s_)
    for s_ in range(PB): ldB(s_)
    for s_ in range(NS):
        if s_ + PA < NS: ldA(s_ + PA)
        ldA2(s_ + PA2)
        if s_ + PB < NS: ldB(s_ + PB)
        need = [i for i, x in enumerate(order) if x == ('a', s_) or x == ('b', s_)]
        n = len(order) - 1 - max(need)
        nb = min(PB, NS - 1 - s_)
        e(f"s_waitcnt vmcnt({n}) lgkmcnt({nb})")
        a = AR[s_%8]; b = BR[s_%4]
        acc = ACC0 if role == 0 else ACC1
        C = "0" if s_ == 0 else f"v[{acc}:{acc+15}]"
        e(f"v_mfma_f32_32x32x16_bf16 v[{acc}:{acc+15}], v[{a}:{a+3}], v[{b}:{b+3}], {C}")
        if role == 0 and s_ >= 32:
            a2 = A2[s_%6]
            C = "0" if s_ == 32 else f"v[{ACC1}:{ACC1+15}]"
            e(f"v_mfma_f32_32x32x16_bf16 v[{ACC1}:{ACC1+15}], v[{a2}:{a2+3}], v[{b}:{b+3}], {C}")
    e("s_setprio 3")
    stamp(e, 7)
    e("s_lshl_b32 s40, s28, 12")
    e(f"s_add_u32 s40, s40, {STG}")
    e("v_add_u32 v6, s40, v3")
    e("s_lshl_b32 s41, s28, 2")
    e(f"s_add_u32 s41, s41, {F_M0}")
    e("v_mov_b32 v9, s41")
    e("v_mul_u32_u24 v7, 1536, v5")
    e("v_lshl_add_u32 v7, v4, 4, v7")
    e("v_add_u32 v7, s33, v7")
    for g in range(2): e(f"ds_read_b128 v[{64+4*g}:{67+4*g}], v7 offset:{g*3072+(32+32*ct)*16}")
    e("v_lshlrev_b32 v8, 10, v5")
    e("v_lshl_add_u32 v8, v4, 4, v8")
    e("s_lshl_b32 s43, s30, 12")
    e(f"s_add_u32 s43, s43, {YT + ct*512}")
    e("v_add_u32 v8, s43, v8")
    e.nop(6)
    if role == 0:
        for i in range(4): e(f"ds_write_b128 v6, v[{ACC1+4*i}:{ACC1+4*i+3}] offset:{1024*i}")
        e("s_waitcnt lgkmcnt(0)")
        e("v_mov_b32 v10, 1")
        e("s_mov_b64 exec, 1")
        e("ds_write_b32 v9, v10")
        e("s_mov_b64 exec, -1")
        ACC = ACC0
    else:
        e("s_mov_b32 s45, 0x400000")
        e.label("CV_SPIN")
        e("ds_read_b32 v10, v9")
        e("s_sub_u32 s45, s45, 1")
        e("s_waitcnt lgkmcnt(0)")
        e("v_readfirstlane_b32 s42, v10")
        e("s_cmp_eq_u32 s45, 0")
        e("s_cbranch_scc1 CV_GO")
        e("s_cmp_lg_u32 s42, 0")
        e("s_cbranch_scc1 CV_GO")
        e("s_sleep 1")
        e("s_branch CV_SPIN")
        e.label("CV_GO")
        for i in range(4): e(f"ds_read_b128 v[{48+4*i}:{48+4*i+3}], v6 offset:{1024*i}")
        e("s_waitcnt lgkmcnt(0)")
        for i in range(16): e(f"v_add_f32 v{ACC1+i}, v{ACC1+i}, v{48+i}")
        ACC = ACC1
    e("s_waitcnt lgkmcnt(0)")
    for g in range(2):
        for i in range(4):
            dw = 64 + 4*g + (3 - i)
            t = 80
            e(f"v_and_b32 v{t}, 0xffff0000, v{dw}")
            e(f"v_lshlrev_b32 v{t+1}, 16, v{dw}")
            e(f"v_mul_f32 v{t}, v{t}, v13")
            e(f"v_mul_f32 v{t+1}, v{t+1}, v13")
            e(f"v_cvt_pk_bf16_f32 v{t+2}, v{t}, v{t+1}")
            e(f"v_cvt_pk_bf16_f32 v{t+3}, v{ACC+4*g+i}, v{ACC+8+4*g+i}")
            e(f"v_lshlrev_b32 v{t}, 16, v{t+2}")
            e(f"v_and_b32 v{t+1}, 0xffff0000, v{t+2}")
            e(f"v_lshlrev_b32 v{t+4}, 16, v{t+3}")
            e(f"v_and_b32 v{t+5}, 0xffff0000, v{t+3}")
            e(f"v_add_f32 v{t}, v{t}, v{t+4}")
            e(f"v_add_f32 v{t+1}, v{t+1}, v{t+5}")
            e(f"v_cvt_pk_bf16_f32 v{88+4*g+i}, v{t}, v{t+1}")
        e(f"global_store_dwordx4 v8, v[{88+4*g}:{91+4*g}], s[62:63] offset:{2048*g} sc1")

YB = 131072
def ytask(e):
    e("s_load_dwordx2 s[4:5], s[0:1], 80")
    e("s_lshl_b32 s51, s25, 7")
    e(f"s_add_u32 s51, s51, {FE3}")
    gpoll(e, None, 32, 8, 51, "E3")
    e("s_and_b32 s51, s26, 3")
    e("s_lshr_b32 s52, s26, 2")
    e("v_and_b32 v16, 7, v2")
    e("v_lshrrev_b32 v17, 3, v2")
    e("s_lshl_b32 s53, s25, 18")
    e("s_lshl_b32 s54, s51, 10")
    e("s_add_u32 s53, s53, s54")
    e("s_lshl_b32 s54, s52, 7")
    e("s_add_u32 s53, s53, s54")
    e(f"s_add_u32 s53, s53, {YT}")
    e("v_lshlrev_b32 v18, 15, v17")
    e("v_lshl_add_u32 v18, v16, 4, v18")
    e("v_add_u32 v18, s53, v18")
    for k in range(8):
        e(f"global_load_dwordx4 v[{32+4*k}:{35+4*k}], v18, s[62:63] sc1")
        if k < 7: e("v_add_u32 v18, 0x1000, v18")
    e("s_lshl_b32 s53, s52, 8")
    e("s_lshl_b32 s54, s51, 3")
    e("s_add_u32 s53, s53, s54")
    e("v_lshlrev_b32 v19, 5, v17")
    e("v_add_u32 v19, s53, v19")
    e("v_lshlrev_b32 v19, 11, v19")
    e("v_lshl_add_u32 v19, v16, 4, v19")
    e("s_lshl_b32 s53, s25, 7")
    e("s_add_u32 s53, s53, 1024")
    e("v_add_u32 v19, s53, v19")
    e("v_lshlrev_b32 v20, 7, v16")
    e("v_lshl_add_u32 v20, v17, 4, v20")
    e(f"v_add_u32 v20, {YB}, v20")
    e("v_lshlrev_b32 v21, 4, v2")
    e(f"v_add_u32 v21, {YB}, v21")
    e("s_mov_b32 s54, 0x05040100")
    e("s_mov_b32 s55, 0x07060302")
    e("s_waitcnt vmcnt(0) lgkmcnt(0)")
    for t in range(8):
        sel = "s54" if t % 2 == 0 else "s55"
        o = 64 + 4*(t % 4)
        for c2 in range(4):
            lo = 32 + 4*(2*c2) + (t >> 1); hi = 32 + 4*(2*c2+1) + (t >> 1)
            e(f"v_perm_b32 v{o+c2}, v{hi}, v{lo}, {sel}")
        e(f"ds_write_b128 v20, v[{o}:{o+3}] offset:{1024*t}")
    e("s_waitcnt lgkmcnt(0)")
    for t in range(8): e(f"ds_read_b128 v[{32+4*t}:{35+4*t}], v21 offset:{1024*t}")
    for t in range(8):
        e(f"s_waitcnt lgkmcnt({7-t})")
        e(f"global_store_dwordx4 v19, v[{32+4*t}:{35+4*t}], s[4:5]{' sc1' if OPT.get('ysc',0) else ''}")
        if t < 7: e("v_add_u32 v19, 0x800, v19")

OB3 = 131072 + 8192
def p3_ids(e):
    e("s_lshl_b32 s27, s25, 3")
    e("s_and_b32 s28, s26, 7")
    e("s_add_u32 s27, s27, s28")
    e("s_lshr_b32 s28, s26, 3")

def wo_setup(e, lw_expr):
    e("s_load_dwordx2 s[4:5], s[0:1], 16")
    p3_ids(e)
    e(lw_expr)
    e("v_lshrrev_b32 v4, 4, v2")
    e("v_and_b32 v5, 15, v2")
    e("v_lshlrev_b32 v6, 2, v4")
    e("v_xor_b32 v5, v5, v6")
    e("v_lshlrev_b32 v4, 10, v4")
    e("v_lshl_add_u32 v4, v5, 4, v4")
    e("s_lshl_b32 s34, s23, 16")
    e("s_lshl_b32 s35, s23, 15")
    e("s_lshl_b32 s29, s28, 8")
    e("s_waitcnt lgkmcnt(0)")
    e("s_add_u32 s4, s4, s29")
    e("s_addc_u32 s5, s5, 0")
    e("s_mov_b32 s16, s4")
    e("s_and_b32 s17, s5, 0xffff")
    e("s_sub_u32 s18, 524288, s29")
    e("s_mov_b32 s19, 0x20000")
def wo_dma(e, late):
    for i in range(16):
        e(f"s_add_u32 m0, s35, {late*16384 + i*1024}")
        e(f"s_add_u32 s36, s34, {late*262144 + i*4096}")
        e("buffer_load_dwordx4 v4, s[16:19], s36 offen lds")

def p3_loader(e):
    wo_setup(e, "s_sub_u32 s23, s24, 8")
    e("v_lshlrev_b32 v3, 4, v2")
    e("s_lshl_b32 s32, s27, 5")
    e("s_lshl_b32 s33, s23, 1")
    e("s_add_u32 s32, s32, s33")
    e("s_lshl_b32 s32, s32, 10")
    e(f"s_add_u32 s32, s32, {OW}")
    e("s_lshl_b32 s33, s23, 11")
    e(f"s_add_u32 s33, s33, 131072")
    srd(e, 12, 62, 63, 0x800000)
    get_nonce(e, 6)
    e(f"v_mov_b32 v6, {F_PR}")
    e("v_and_b32 v7, 7, v2")
    e("v_lshl_add_u32 v6, v7, 2, v6")
    e("s_mov_b32 s52, 0x400000")
    e.label("P3L_PW")
    e("ds_read_b32 v7, v6")
    e("s_sub_u32 s52, s52, 1")
    e("s_waitcnt lgkmcnt(0)")
    e("v_cmp_le_u32 vcc, 16, v7")
    e("s_cmp_eq_u32 s52, 0")
    e("s_cbranch_scc1 P3L_PD")
    e("s_cmp_eq_u64 vcc, exec")
    e("s_cbranch_scc1 P3L_PD")
    e("s_sleep 8")
    e("s_branch P3L_PW")
    e.label("P3L_PD")
    wo_dma(e, 0)
    e("s_lshl_b32 s51, s27, 7")
    e(f"s_add_u32 s51, s51, {FE4}")
    e("s_barrier")
    e("s_barrier")
    e(f"v_mov_b32 v6, {F_FALL}")
    e("ds_read_b32 v7, v6")
    e("s_waitcnt lgkmcnt(0)")
    e("v_readfirstlane_b32 s36, v7")
    e("s_nop 3")
    e("s_cmp_eq_u32 s36, 0")
    e("s_cbranch_scc1 P3L_NOFB")
    e("s_waitcnt vmcnt(0)")
    e("s_lshr_b32 s40, s23, 1")
    e("s_and_b32 s41, s23, 1")
    e("s_lshl_b32 s42, s25, 2")
    e("s_and_b32 s43, s26, 3")
    e("s_add_u32 s42, s42, s43")
    e("s_lshl_b32 s42, s42, 6")
    e("s_lshl_b32 s43, s40, 5")
    e("s_add_u32 s42, s42, s43")
    e("s_lshl_b32 s42, s42, 10")
    e(f"s_mul_i32 s43, s41, {VF-KF}")
    e("s_add_u32 s42, s42, s43")
    e(f"s_add_u32 s42, s42, {KF}")
    for t in range(16):
        e(f"s_add_u32 m0, s35, {t*1024}")
        e(f"s_add_u32 s36, s42, {t*1024}")
        e("buffer_load_dwordx4 v3, s[12:15], s36 offen sc1 lds")
    e("s_waitcnt vmcnt(0)")
    e("s_barrier")
    e("s_barrier")
    e("s_barrier")
    wo_dma(e, 0)
    e.label("P3L_NOFB")
    e("s_barrier")
    stamp(e, 10)
    e("s_cmp_lg_u32 s23, 0")
    e("s_cbranch_scc1 P3L_NP")
    gpoll(e, None, 32, 8, 51, "E4")
    e.label("P3L_NP")
    e("s_barrier")
    stamp(e, 11)
    for c in range(4):
        for i in range(2):
            e(f"s_add_u32 m0, s33, {(8*c+i)*1024}")
            e(f"s_add_u32 s36, s32, {(8*c+i)*1024}")
            e("buffer_load_dwordx4 v3, s[12:15], s36 offen sc1 lds")
    e("s_waitcnt vmcnt(0)")
    e("s_barrier")

def p3_compute(e):
    e("s_load_dwordx2 s[6:7], s[0:1], 80")
    p3_ids(e)
    e("v_lshlrev_b32 v3, 4, v2")
    e("v_add_u32 v6, 131072, v3")
    e("v_lshrrev_b32 v7, 5, v2")
    e("v_bfe_u32 v8, v2, 2, 2")
    e("v_lshl_add_u32 v7, v7, 2, v8")
    e("v_bfe_u32 v9, v2, 4, 1")
    e("v_lshlrev_b32 v9, 1, v9")
    e("v_bfe_u32 v11, v2, 1, 1")
    e("v_add_u32 v9, v9, v11")
    e("s_lshl_b32 s37, s24, 2")
    e("v_add_u32 v9, s37, v9")
    e("v_lshlrev_b32 v8, 2, v8")
    e("v_xor_b32 v9, v9, v8")
    e("v_lshlrev_b32 v7, 8, v7")
    e("v_lshl_add_u32 v7, v9, 4, v7")
    e("v_and_b32 v9, 1, v2")
    e("v_lshl_add_u32 v7, v9, 3, v7")
    e("v_add_u32 v12, 0x10000, v7")
    e("v_and_b32 v10, 31, v2")
    e("v_lshlrev_b32 v10, 11, v10")
    e("v_lshrrev_b32 v9, 5, v2")
    e("v_lshl_add_u32 v10, v9, 3, v10")
    e("s_lshl_b32 s36, s27, 16")
    e("s_lshl_b32 s37, s28, 8")
    e("s_add_u32 s36, s36, s37")
    e("s_lshl_b32 s37, s24, 6")
    e("s_add_u32 s36, s36, s37")
    e("v_add_u32 v10, s36, v10")
    ACC = 16
    def rd(hd):
        b = 32 + 8*(hd % 4)
        p = (hd >> 2) & 3; late = hd >> 4
        va = 7 if p < 2 else 12
        off = (p & 1)*32768 + late*16384 + (hd & 3)*4096
        e(f"ds_read_b128 v[{b}:{b+3}], v6 offset:{hd*1024}")
        e(f"ds_read_b64_tr_b16 v[{b+4}:{b+5}], v{va} offset:{off}")
        e(f"ds_read_b64_tr_b16 v[{b+6}:{b+7}], v{va} offset:{off+2048}")
    TP = OPT.get('tailprof', 0)
    if TP: stamp(e, 1)
    e("s_barrier")
    if TP: stamp(e, 2)
    e("s_barrier")
    e("s_barrier")
    if TP: stamp(e, 3)
    rd(0); rd(1); rd(2)
    for hd in range(32):
        if hd + 3 < 32:
            rd(hd+3); e("s_waitcnt lgkmcnt(9)")
        else: e(f"s_waitcnt lgkmcnt({3*(31-hd)})")
        b = 32 + 8*(hd % 4)
        C = "0" if hd == 0 else f"v[{ACC}:{ACC+15}]"
        e(f"v_mfma_f32_32x32x16_bf16 v[{ACC}:{ACC+15}], v[{b+4}:{b+7}], v[{b}:{b+3}], {C}")
    if TP: stamp(e, 6)
    e.nop(14)
    for i in range(8): e(f"v_cvt_pk_bf16_f32 v{ACC+i}, v{ACC+2*i}, v{ACC+2*i+1}")
    for g in range(4): e(f"global_store_dwordx2 v10, v[{ACC+2*g}:{ACC+2*g+1}], s[6:7] offset:{16*g}{' sc1' if OPT.get('osc',0) else ''}")

def publish(e, items, vt):
    e(f"v_mov_b32 v{vt}, s{items[0]}")
    if len(items) > 1:
        e(f"v_mov_b32 v{vt+2}, s{items[1]}")
        e("v_cmp_eq_u32 vcc, 1, v2")
        e("s_nop 1")
        e(f"v_cndmask_b32 v{vt}, v{vt}, v{vt+2}, vcc")
    e(f"v_mov_b32 v{vt+1}, s60")
    e(f"s_mov_b64 exec, {(1 << len(items)) - 1}")
    e(f"global_store_dword v{vt}, v{vt+1}, s[62:63] sc1")
    e("s_mov_b64 exec, -1")

def gen():
    e = E()
    e("s_cmp_ge_u32 s2, 256")
    e("s_cbranch_scc1 KM_END")
    stamp(e, 0)
    e("s_load_dwordx2 s[62:63], s[0:1], 96")
    e("v_lshrrev_b32 v1, 6, v0")
    e("v_and_b32 v2, 63, v0")
    e("v_readfirstlane_b32 s24, v1")
    e("s_and_b32 s25, s2, 7")
    e("s_lshr_b32 s26, s2, 3")
    e(f"s_mov_b32 s61, {FE1}")
    e("s_cmp_ge_u32 s24, 8")
    e("s_cbranch_scc1 KM_B")
    params_load(e)
    e("s_cmp_ge_u32 s24, 4")
    e("s_cbranch_scc1 KM_A47")
    p1_compute(e)
    e("s_branch KM_A_P1E")
    e.label("KM_A47")
    e("s_cmp_lg_u32 s24, 5")
    e("s_cbranch_scc1 KM_NON_D")
    e("s_cmp_lg_u32 s2, 0")
    e("s_cbranch_scc1 KM_NON_D")
    e("s_load_dwordx2 s[50:51], s[0:1], 88")
    e("s_memrealtime s[52:53]")
    e("s_waitcnt lgkmcnt(0)")
    e("s_or_b32 s52, s52, 1")
    e("v_mov_b32 v6, s52")
    e("v_mov_b32 v7, 0")
    e("s_mov_b64 exec, 1")
    e("global_store_dword v7, v6, s[50:51] sc1")
    e("s_mov_b64 exec, -1")
    e.label("KM_NON_D")
    e("s_cmp_lg_u32 s24, 4")
    e("s_cbranch_scc1 KM_A567")
    e("v_lshlrev_b32 v6, 2, v2")
    e(f"v_add_u32 v6, {FLG}, v6")
    e("v_mov_b32 v7, 0")
    e("s_mov_b32 s40, 0x00ff0f7f")
    e("s_mov_b32 s41, 0")
    e("s_mov_b64 exec, s[40:41]")
    e("ds_write_b32 v6, v7")
    e("s_mov_b64 exec, -1")
    touches(e)
    e("s_waitcnt lgkmcnt(0)")
    for i in range(NST+1): e("s_barrier")
    e("s_branch KM_A_P1E")
    e.label("KM_A567")
    for i in range(NST+1): e("s_barrier")
    e.label("KM_A_P1E")
    stamp(e, 5)
    kgen8(e)
    get_nonce(e, 6)
    attn(e)
    e("s_lshl_b32 s36, s28, 3")
    e("s_lshl_b32 s37, s29, 1")
    e("s_add_u32 s36, s36, s37")
    e("s_add_u32 s36, s36, s30")
    e("s_lshl_b32 s36, s36, 5")
    e("s_add_u32 s36, s36, s27")
    e("s_lshl_b32 s36, s36, 2")
    e(f"s_add_u32 s36, s36, {FE4}")
    e("s_waitcnt vmcnt(0)")
    pub1(e, 36, 6)
    stamp(e, 11)
    e("s_cmp_ge_u32 s24, 4")
    e("s_cbranch_scc1 KM_A47_P3")
    p3_compute(e)
    if PROF["on"]:
        e("s_waitcnt vmcnt(0)")
    stamp_flush(e, 0, 12)
    e("s_endpgm")
    e.label("KM_A47_P3")
    e("s_barrier")
    wo_setup(e, "s_sub_u32 s23, s24, 4")
    wo_dma(e, 1)
    e("s_barrier")
    e("s_waitcnt vmcnt(0)")
    e("s_barrier")
    stamp_flush(e, 0, 12)
    e("s_endpgm")
    e.label("KM_B")
    e("s_cmp_eq_u32 s24, 11")
    e("s_cbranch_scc1 KM_B3")
    p1_loader(e)
    stamp(e, 2)
    e("s_branch KM_NOUT")
    e.label("KM_B3")
    p1_loader(e, with_ut=True)
    stamp(e, 2)
    e("s_load_dwordx2 s[50:51], s[0:1], 88")
    e("v_mov_b32 v5, 0")
    e("s_waitcnt lgkmcnt(0)")
    e("global_load_dword v59, v5, s[50:51] sc1")
    ut_finish_a(e)
    ut_finish_b(e)
    e("s_mov_b32 s39, 0x100000")
    e("s_waitcnt vmcnt(0)")
    e.label("UT_NON")
    e("v_readfirstlane_b32 s60, v59")
    e("s_sub_u32 s39, s39, 1")
    e("s_cmp_lg_u32 s60, 0")
    e("s_cbranch_scc1 UT_NOND")
    e("s_cmp_eq_u32 s39, 0")
    e("s_cbranch_scc1 UT_NOND")
    e("global_load_dword v59, v5, s[50:51] sc1")
    e("s_waitcnt vmcnt(0)")
    e("s_branch UT_NON")
    e.label("UT_NOND")
    e("s_lshl_b32 s51, s25, 5")
    e("s_add_u32 s51, s51, s26")
    e("s_lshl_b32 s51, s51, 2")
    e(f"s_add_u32 s51, s51, {FE2}")
    pub1(e, 51, 6)
    e.label("KM_NOUT")
    b_phase2(e)
    p3_loader(e)
    stamp_flush(e, 0, 12)
    e.label("KM_END")
    e("s_endpgm")
    return e.text()
```
